```python
import torch

def _softmax(x, axis=-1):
    return torch.softmax(x, dim=axis)
def _gelu(x):
    return torch.nn.functional.gelu(x, approximate="tanh")
def _silu(x):
    return torch.nn.functional.silu(x)
def _sigmoid(x):
    return torch.sigmoid(x)
def _layernorm(x, axis=-1, eps=1e-5):
    m = x.mean(dim=axis, keepdim=True)
    v = x.var(dim=axis, keepdim=True, unbiased=False)
    return (x - m) / torch.sqrt(v + eps)
def _scatter_add(tgt, idx, src, axis=0):
    return tgt.clone().index_add_(axis, idx, src)
def _segment_sum(src, seg, n):
    out = torch.zeros((n,) + src.shape[1:], dtype=src.dtype)
    return out.index_add_(0, seg, src)
def _pad(x, pw):
    flat = tuple(v for pair in reversed(pw) for v in pair)
    return torch.nn.functional.pad(x, flat)

kernel_name = 'interleave_layers__mha_block__mixer_channel_mlp__prompt'

def setup_inputs():

    _w = (lambda a: (lambda t: t.to(torch.bfloat16) if t.is_floating_point() else t)(torch.as_tensor(a)))
    def _A_setup():
        B, S, D, H = 1, 2048, 512, 32
        return {
            "x": _w((lambda *s: torch.randn(*s, dtype=torch.bfloat16) * 0.05)(B, S, D)),
            "wqkv": _w((lambda *s: torch.randn(*s, dtype=torch.bfloat16) * 0.05)(D, 3 * D)),
            "wo": _w((lambda *s: torch.randn(*s, dtype=torch.bfloat16) * 0.05)(D, D)),
        }
    _A_in = _A_setup()

    def _B_setup():
        B, S, D, F = 1, 2048, 512, 1792
        return {
            "x": _w((lambda *s: torch.randn(*s, dtype=torch.bfloat16) * 0.05)(B, S, D)),
            "w1": _w((lambda *s: torch.randn(*s, dtype=torch.bfloat16) * 3.2)(D, F) * (D ** -0.5)),
            "b1": _w((lambda *s: torch.randn(*s, dtype=torch.bfloat16) * 0.8)(F)),
            "w2": _w((lambda *s: torch.randn(*s, dtype=torch.bfloat16) * 0.2)(F, D) * (F ** -0.5)),
            "b2": _w((lambda *s: torch.randn(*s, dtype=torch.bfloat16) * 0.2)(D)),
        }
    _B_in = _B_setup()

    return {
        "A_x": _A_in["x"],
        "A_wqkv": _A_in["wqkv"],
        "A_wo": _A_in["wo"],
        "B_x": _B_in["x"],
        "B_w1": _B_in["w1"],
        "B_b1": _B_in["b1"],
        "B_w2": _B_in["w2"],
        "B_b2": _B_in["b2"],
    }

def reference(A_x, A_wqkv, A_wo, B_x, B_w1, B_b1, B_w2, B_b2):
    def _A_ref(x, wqkv, wo):
        B, S, D = x.shape
        H = 32
        Dh = D // H
        qkv = (lambda x, *d: x.permute(*d))((x @ wqkv).reshape(B, S, 3, H, Dh), 2, 0, 3, 1, 4)
        q, k, v = qkv[0], qkv[1], qkv[2]
        scores = torch.einsum("bhqd,bhkd->bhqk", q, k) * (Dh ** -0.5)
        p = _softmax(scores, axis=-1)
        o = torch.einsum("bhqk,bhkd->bhqd", p, v)
        return (lambda x, *d: x.permute(*d))(o, 0, 2, 1, 3).reshape(B, S, D) @ wo

    def _B_ref(x, w1, b1, w2, b2):
        y = _layernorm(x, axis=-1)
        h = _gelu(torch.einsum("bsd,df->bsf", y, w1) + b1)
        return torch.einsum("bsf,fd->bsd", h, w2) + b2

    x = A_x
    x = x + _A_ref(_layernorm(x, axis=-1), A_wqkv, A_wo)
    x = x + _B_ref(_layernorm(x, axis=-1), B_w1, B_b1, B_w2, B_b2)
    x = x + _A_ref(_layernorm(x, axis=-1), A_wqkv, A_wo)
    x = x + _B_ref(_layernorm(x, axis=-1), B_w1, B_b1, B_w2, B_b2)
    return x
```

```python
import re

REG_RE = re.compile(r'\b([vas])(?:\[(\d+):(\d+)\]|(\d+)\b)')
TRANS = ('v_exp_f32', 'v_log_f32', 'v_rcp_f32', 'v_rsq_f32', 'v_sqrt_f32', 'v_sin_f32', 'v_cos_f32',
         'v_exp_f16', 'v_log_f16', 'v_rcp_f16', 'v_rsq_f16', 'v_sqrt_f16', 'v_rcp_iflag_f32')


def regs_of(tok):
    out = set()
    t = tok.strip()
    for m in REG_RE.finditer(t):
        k = m.group(1)
        if m.group(4) is not None:
            out.add((k, int(m.group(4))))
        else:
            for i in range(int(m.group(2)), int(m.group(3)) + 1):
                out.add((k, i))
    if re.search(r'\bvcc(_lo|_hi)?\b', t):
        out.add(('s', 'vcc'))
    if re.search(r'\bexec(_lo|_hi)?\b', t):
        out.add(('s', 'exec'))
    if re.search(r'\bm0\b', t):
        out.add(('s', 'm0'))
    return out


def split_ops(s):
    ops, depth, cur = [], 0, ''
    for ch in s:
        if ch in '[(':
            depth += 1
        elif ch in '])':
            depth -= 1
        if ch == ',' and depth == 0:
            ops.append(cur.strip())
            cur = ''
        else:
            cur += ch
    if cur.strip():
        ops.append(cur.strip())
    return ops


class Ins:
    __slots__ = ('text', 'op', 'kind', 'dst', 'src', 'srcA', 'srcB', 'srcC', 'passes', 'trans', 'dot', 'dpp',
                 'perm', 'lds_dma', 'wide_store', 'nop', 'label', 'target', 'rdlane', 'sel')

    def __init__(self, text):
        self.text = text
        self.label = None
        self.target = None
        self.dst = set()
        self.src = set()
        self.srcA = self.srcB = self.srcC = set()
        self.passes = 0
        self.trans = self.dot = self.dpp = self.perm = self.lds_dma = self.wide_store = False
        self.rdlane = self.sel = False
        self.nop = 1
        body = text.split(';')[0].strip()
        if body.endswith(':'):
            self.kind = 'label'
            self.label = body[:-1]
            self.op = ''
            self.nop = 0
            return
        if not body or body.startswith('.'):
            self.kind = 'dir'
            self.op = ''
            self.nop = 0
            return
        parts = body.split(None, 1)
        op = parts[0]
        rest = parts[1] if len(parts) > 1 else ''
        self.op = op
        ops = split_ops(rest)
        base = re.sub(r'_(e32|e64|dpp|sdwa)$', '', op)
        R = [regs_of(o) for o in ops]
        allr = set().union(*R) if R else set()
        if op.startswith('v_mfma'):
            self.kind = 'mfma'
            self.dst = R[0]
            self.srcA, self.srcB = R[1], R[2]
            self.srcC = R[3]
            self.src = R[1] | R[2] | R[3]
            self.passes = 8 if '32x32' in op else 4
        elif op.startswith('v_'):
            self.kind = 'valu'
            self.trans = base in TRANS
            self.dot = base.startswith('v_dot')
            self.dpp = bool(re.search(r'quad_perm|row_|wave_|bank_mask', rest))
            self.sel = 'dst_sel' in rest
            if base.startswith('v_permlane'):
                self.perm = True
                self.dst = R[0] | R[1]
                self.src = R[0] | R[1]
            elif base in ('v_nop',):
                pass
            else:
                self.dst = set(R[0])
                srcs = R[1:]
                if re.match(r'v_(add|sub|subrev|addc|subb|subbrev)_co_', base) or base.startswith('v_div_scale'):
                    self.dst |= R[1]
                    srcs = R[2:]
                if base.startswith('v_cmpx'):
                    self.dst.add(('s', 'exec'))
                self.src = set().union(*srcs) if srcs else set()
                if re.match(r'v_(fmac|mac|dot\w*c_|pk_fmac|writelane)', base) or self.dpp or self.sel:
                    self.src |= R[0]
                if base in ('v_readfirstlane_b32', 'v_readlane_b32'):
                    self.rdlane = True
        elif op.startswith(('buffer_', 'global_', 'flat_')):
            self.kind = 'vmem'
            if 'load' in op and (re.search(r'\blds\b', rest) or '_lds_' in op):
                self.lds_dma = True
                self.src = allr | {('s', 'm0')}
            elif 'load' in op:
                self.dst = R[0]
                self.src = set().union(*R[1:])
            else:
                self.src = allr
                if re.search(r'x3|x4', op):
                    self.wide_store = True
                    self.srcC = R[0] if op.startswith('buffer_') else R[1]
        elif op.startswith('ds_'):
            self.kind = 'ds'
            if 'read' in op or 'permute' in op or 'swizzle' in op or '_rtn' in op:
                self.dst = R[0]
                self.src = set().union(*R[1:]) if len(R) > 1 else set()
            else:
                self.src = allr
        elif op.startswith('s_'):
            self.kind = 'salu'
            if op == 's_nop':
                self.nop = int(rest, 0) + 1
            elif op.startswith(('s_branch', 's_cbranch')):
                self.kind = 'branch'
                self.target = rest.strip()
            elif op.startswith(('s_cmp', 's_waitcnt', 's_barrier', 's_setprio', 's_endpgm', 's_bitcmp', 's_sleep')):
                self.src = allr
            else:
                self.dst = set(R[0]) if R else set()
                self.src = set().union(*R[1:]) if len(R) > 1 else set()
                if 'saveexec' in op:
                    self.dst.add(('s', 'exec'))
        else:
            raise ValueError('unknown instruction: ' + text)


def isv(rs):
    return {r for r in rs if r[0] in 'va'}


def iss(rs):
    return {r for r in rs if r[0] == 's'}


def need(p, c):
    n = 0
    if p.kind == 'valu':
        pv, ps = isv(p.dst), iss(p.dst)
        if c.kind == 'mfma':
            if pv & c.src:
                n = max(n, 3 if p.dot else 2)
            if ('s', 'exec') in ps:
                n = max(n, 4)
        if c.kind == 'valu':
            if p.trans and not c.trans and (pv & c.src):
                n = max(n, 1)
            if p.trans and c.trans and (pv & c.src):
                n = max(n, 1)
            if p.dot and (pv & (c.src | c.dst)):
                if not (c.op == p.op and not _dot_ab(c, pv)):
                    n = max(n, 3)
            if c.perm and (pv & c.src):
                n = max(n, 2)
            if c.dpp and (pv & c.src):
                n = max(n, 2)
            if c.rdlane and (pv & c.src):
                n = max(n, 1)
            if p.sel and (pv & (c.src | c.dst)):
                n = max(n, 1)
            if ps & c.src:
                n = max(n, 4 if c.op.startswith(('v_readlane', 'v_writelane', 'v_div_fmas')) else 2)
            if ('s', 'exec') in ps and (c.dpp or c.perm or c.rdlane):
                n = max(n, 5)
        if c.kind in ('vmem', 'ds'):
            if ps & c.src:
                n = max(n, 5)
            if p.dot and (pv & c.src):
                n = max(n, 3)
            if p.trans and (pv & c.src):
                n = max(n, 1)
        if c.kind == 'branch' and (ps & {('s', 'exec')}) and ('exec' in c.op):
            n = max(n, 5)
    if p.kind == 'mfma':
        big = {8: 12, 4: 8}[p.passes]
        if c.kind == 'mfma':
            if p.dst & (c.srcA | c.srcB):
                n = max(n, big)
            if p.dst & c.srcC:
                if not (c.srcC == p.dst and c.passes == p.passes):
                    n = max(n, big - 2)
            elif p.dst & c.dst:
                n = max(n, big)
        elif c.kind in ('valu', 'vmem', 'ds'):
            if p.dst & (c.src | c.dst):
                n = max(n, big)
            if c.kind == 'valu' and (isv(p.srcC) & c.dst):
                n = max(n, {8: 7, 4: 3}[p.passes])
    if p.kind == 'salu':
        if ('s', 'm0') in p.dst and c.lds_dma:
            n = max(n, 1)
    if p.kind == 'vmem' and p.wide_store:
        if p.srcC & c.dst:
            n = max(n, 2 if c.kind in ('valu', 'mfma') else 1)
    if p.kind in ('vmem', 'ds') and c.kind == 'valu' and c.dpp and (p.dst & c.src):
        pass
    return n


def _dot_ab(c, pv):
    ops = split_ops(c.text.split(';')[0].strip().split(None, 1)[1])
    ab = regs_of(ops[1]) | regs_of(ops[2])
    return bool(ab & pv)


WINDOW = 14


class Prog:
    def __init__(self):
        self.ins = []

    def __call__(self, text):
        for line in text.split('\n'):
            line = line.strip()
            if line and not line.startswith(';'):
                self.ins.append(Ins(line))

    def label(self, name):
        self.ins.append(Ins(name + ':'))

    def _fix_linear(self, seq):
        out = []
        added = 0
        for c in seq:
            if c.kind in ('label', 'dir'):
                out.append(c)
                continue
            req = 0
            dist = 0
            for p in reversed(out):
                if p.kind in ('label', 'dir'):
                    continue
                if p.op in ('s_branch', 's_endpgm'):
                    break
                r = need(p, c) - dist
                if r > req:
                    req = r
                dist += p.nop
                if dist >= WINDOW:
                    break
            while req > 0:
                k = min(req, 16)
                out.append(Ins('s_nop %d' % (k - 1)))
                req -= k
                added += 1
            out.append(c)
        return out, added

    def fix(self):
        seq, _ = self._fix_linear(self.ins)
        changed = True
        while changed:
            changed = False
            labels = {x.label: i for i, x in enumerate(seq) if x.kind == 'label'}
            for j, b in enumerate(seq):
                if b.kind != 'branch' or b.target not in labels:
                    continue
                pre = []
                d = 0
                for p in reversed(seq[:j + 1]):
                    if p.kind in ('label', 'dir'):
                        continue
                    if p is not b and p.op in ('s_branch', 's_endpgm'):
                        break
                    pre.append(p)
                    d += p.nop
                    if d >= WINDOW:
                        break
                req = 0
                dpost = 0
                for c in seq[labels[b.target]:]:
                    if c.kind in ('label', 'dir'):
                        continue
                    dist = dpost
                    for p in pre:
                        r = need(p, c) - dist
                        req = max(req, r)
                        dist += p.nop
                    dpost += c.nop
                    if dpost >= WINDOW or c.op in ('s_branch', 's_endpgm'):
                        break
                if req > 0:
                    seq.insert(j, Ins('s_nop %d' % (req - 1)))
                    changed = True
                    break
        self.ins = seq

    def text(self):
        out = []
        for i in self.ins:
            if i.kind in ('label', 'dir'):
                out.append(i.text)
            else:
                out.append('    ' + i.text)
        return '\n'.join(out) + '\n'


def v(a, n=1):
    return 'v%d' % a if n == 1 else 'v[%d:%d]' % (a, a + n - 1)


def a_(a, n=1):
    return 'a%d' % a if n == 1 else 'a[%d:%d]' % (a, a + n - 1)


def s(a, n=1):
    return 's%d' % a if n == 1 else 's[%d:%d]' % (a, a + n - 1)
```

```python
import os
import struct
import sys

sys.path.insert(0, os.path.dirname(os.path.abspath(__file__)))
from asmlib import Prog, v, a_, s

MAIN = 'interleave_layers__mha_block__mixer_channel_mlp__prompt'

WQKV_F = 0x000000
WO_F = 0x180000
W1_F = 0x200000
W2_F = 0x400000
X_F = 0x600000
X1_F = 0x800000
Q_F = 0xA00000
K_F = 0xC00000
VT_F = 0xE00000
O_F = 0x1000000
H_F = 0x1200000
ST_X = 0x1900000
ST_X1 = 0x1940000
WS_BYTES = 0x10000000

MFMA = 'v_mfma_f32_32x32x16_bf16'


def f2u(x):
    return '0x%08x' % struct.unpack('<I', struct.pack('<f', x))[0]


class VM:
    def __init__(self, p):
        self.p = p
        self.tags = []

    def issue(self, text, tag):
        self.p(text)
        self.tags.append(tag)

    def wait(self, *tags):
        last = max(i for i, t in enumerate(self.tags) if t in tags)
        n = len(self.tags) - 1 - last
        self.p('s_waitcnt vmcnt(%d)' % min(n, 63))


def kernel_head(p, name):
    p('.p2align 8')
    p('.type %s,@function' % name)
    p.label(name)


def ws_srd(p):
    p('s_load_dwordx2 s[4:5], s[0:1], 80')
    p('s_mov_b32 s6, 0x%x' % WS_BYTES)
    p('s_mov_b32 s7, 0x00020000')


def gen_prep(p, name):
    NX, NW = 256, 352
    kernel_head(p, name)
    p('s_cmp_ge_u32 s2, %d' % (NX + NW))
    p('s_cbranch_scc1 prep_end')
    ws_srd(p)
    p('v_lshrrev_b32 v1, 6, v0')
    p('v_and_b32 v2, 63, v0')
    p('v_readfirstlane_b32 s3, v1')
    p('v_lshlrev_b32 v3, 4, v2')
    p('s_lshr_b32 s20, s2, 3')
    p('s_lshl_b32 s20, s20, 2')
    p('s_add_u32 s20, s20, s3')
    p('s_cmp_ge_u32 s20, (code_end-code_begin)>>10')
    p('s_cbranch_scc1 prep_nopf')
    p('s_getpc_b64 s[22:23]')
    p.label('prep_pc')
    p('s_lshl_b32 s20, s20, 10')
    p('s_add_u32 s20, s20, code_begin-prep_pc')
    p('s_add_u32 s22, s22, s20')
    p('s_addc_u32 s23, s23, 0')
    p('global_load_dwordx4 v[40:43], v3, s[22:23]')
    p.label('prep_nopf')
    p('s_cmp_ge_u32 s2, %d' % NX)
    p('s_cbranch_scc1 prep_w')
    p('s_load_dwordx2 s[8:9], s[0:1], 0')
    p('s_mov_b32 s10, 0x200000')
    p('s_mov_b32 s11, 0x00020000')
    p('s_lshl_b32 s12, s2, 3')
    p('s_lshl_b32 s13, s3, 1')
    p('s_add_u32 s12, s12, s13')
    p('s_lshl_b32 s13, s12, 10')
    p('s_waitcnt lgkmcnt(0)')
    p('buffer_load_dwordx4 v[4:7], v3, s[8:11], s13 offen')
    p('buffer_load_dwordx4 v[8:11], v3, s[8:11], s13 offen offset:1024')
    p('v_lshrrev_b32 v12, 1, v2')
    p('v_lshlrev_b32 v12, 10, v12')
    p('v_and_b32 v13, 1, v2')
    p('v_lshl_add_u32 v12, v13, 9, v12')
    p('v_cmp_eq_u32 vcc, 1, v13')
    p('s_lshr_b32 s14, s12, 5')
    p('s_and_b32 s15, s12, 31')
    p('s_lshl_b32 s16, s14, 15')
    p('s_lshl_b32 s17, s15, 4')
    p('s_add_u32 s16, s16, s17')
    p('s_add_u32 s16, s16, 0x%x' % X_F)
    p('s_lshl_b32 s18, s14, 12')
    p('s_add_u32 s18, s18, s17')
    p('s_add_u32 s18, s18, 0x%x' % ST_X)
    p('v_sub_u32 v14, 63, v2')
    p('v_lshlrev_b32 v14, 9, v14')
    p('s_mov_b32 s19, 0x3f803f80')
    for r in (16, 17, 18, 19, 20, 21, 22, 23):
        p('v_mov_b32 v%d, 0' % r)
    p('s_waitcnt vmcnt(0)')
    for row in range(2):
        d = 4 + 4 * row
        st = 16 + 4 * row
        for i in range(4):
            p('v_dot2_f32_bf16 v%d, v%d, s19, v%d' % (st, d + i, st))
            p('v_dot2_f32_bf16 v%d, v%d, v%d, v%d' % (st + 1, d + i, d + i, st + 1))
    for row in range(2):
        d = 4 + 4 * row
        o = 24 + 8 * row
        p('v_cndmask_b32 v%d, v%d, v%d, vcc' % (o + 4, d + 2, d + 0))
        p('v_cndmask_b32 v%d, v%d, v%d, vcc' % (o + 5, d + 3, d + 1))
        p('v_mov_b32_dpp v%d, v%d quad_perm:[1,0,3,2] row_mask:0xf bank_mask:0xf' % (o + 6, o + 4))
        p('v_mov_b32_dpp v%d, v%d quad_perm:[1,0,3,2] row_mask:0xf bank_mask:0xf' % (o + 7, o + 5))
        p('v_cndmask_b32 v%d, v%d, v%d, vcc' % (o + 0, d + 0, o + 6))
        p('v_cndmask_b32 v%d, v%d, v%d, vcc' % (o + 1, d + 1, o + 7))
        p('v_cndmask_b32 v%d, v%d, v%d, vcc' % (o + 2, o + 6, d + 2))
        p('v_cndmask_b32 v%d, v%d, v%d, vcc' % (o + 3, o + 7, d + 3))
        p('buffer_store_dwordx4 %s, v12, s[4:7], s16 offen offset:%d' % (v(o, 4), 16 * row))
    for ctl in ('row_shr:1 row_mask:0xf bank_mask:0xf bound_ctrl:0',
                'row_shr:2 row_mask:0xf bank_mask:0xf bound_ctrl:0',
                'row_shr:4 row_mask:0xf bank_mask:0xf bound_ctrl:0',
                'row_shr:8 row_mask:0xf bank_mask:0xf bound_ctrl:0',
                'row_bcast:15 row_mask:0xa bank_mask:0xf',
                'row_bcast:31 row_mask:0xc bank_mask:0xf'):
        for r in (16, 17, 20, 21):
            p('v_add_f32_dpp v%d, v%d, v%d %s' % (r, r, r, ctl))
    p('s_mov_b32 exec_lo, 0')
    p('s_mov_b32 exec_hi, 0x7f000000')
    for r in (16, 17, 20, 21):
        p('v_mov_b32 v%d, 0' % r)
    p('s_mov_b32 exec_hi, 0xff000000')
    p('buffer_store_dwordx4 v[16:19], v14, s[4:7], s18 offen')
    p('buffer_store_dwordx4 v[20:23], v14, s[4:7], s18 offen offset:16')
    p('s_endpgm')
    p.label('prep_w')
    p('s_sub_u32 s12, s2, %d' % NX)
    p('s_lshr_b32 s24, s3, 1')
    p('s_and_b32 s25, s3, 1')
    p('s_cmp_ge_u32 s12, 240')
    p('s_cbranch_scc1 prep_w2')
    p('s_lshr_b32 s13, s12, 4')
    p('s_and_b32 s14, s12, 15')
    p('s_mov_b32 s18, 32')
    p('s_cmp_ge_u32 s13, 8')
    p('s_cbranch_scc1 prep_w1')
    p('s_cmp_ge_u32 s13, 6')
    p('s_cbranch_scc1 prep_wo')
    p('s_load_dwordx2 s[8:9], s[0:1], 8')
    p('s_mov_b32 s10, %d' % (512 * 1536 * 2))
    p('s_mov_b32 s16, 3072')
    p('s_mov_b32 s17, 0x%x' % WQKV_F)
    p('s_branch prep_wgo')
    p.label('prep_wo')
    p('s_load_dwordx2 s[8:9], s[0:1], 16')
    p('s_mov_b32 s10, %d' % (512 * 512 * 2))
    p('s_mov_b32 s16, 1024')
    p('s_mov_b32 s17, 0x%x' % WO_F)
    p('s_sub_u32 s13, s13, 6')
    p('s_branch prep_wgo')
    p.label('prep_w1')
    p('s_load_dwordx2 s[8:9], s[0:1], 32')
    p('s_mov_b32 s10, %d' % (512 * 1792 * 2))
    p('s_mov_b32 s16, 3584')
    p('s_mov_b32 s17, 0x%x' % W1_F)
    p('s_sub_u32 s13, s13, 8')
    p('s_branch prep_wgo')
    p.label('prep_w2')
    p('s_load_dwordx2 s[8:9], s[0:1], 48')
    p('s_mov_b32 s10, %d' % (512 * 1792 * 2))
    p('s_mov_b32 s16, 1024')
    p('s_mov_b32 s17, 0x%x' % W2_F)
    p('s_mov_b32 s18, 112')
    p('s_sub_u32 s14, s12, 240')
    p('s_cmp_ge_u32 s14, 56')
    p('s_cselect_b32 s13, 1, 0')
    p('s_cselect_b32 s15, 56, 0')
    p('s_sub_u32 s14, s14, s15')
    p.label('prep_wgo')
    p('s_mov_b32 s11, 0x00020000')
    p('s_lshl_b32 s14, s14, 1')
    p('s_add_u32 s14, s14, s24')
    p('s_lshl_b32 s19, s14, 4')
    p('s_lshl_b32 s26, s25, 2')
    p('s_add_u32 s19, s19, s26')
    p('s_mul_i32 s19, s19, s16')
    p('s_lshl_b32 s26, s13, 9')
    p('s_add_u32 s30, s19, s26')
    p('s_add_u32 s31, s30, s16')
    p('s_add_u32 s32, s31, s16')
    p('s_add_u32 s33, s32, s16')
    p('s_lshl_b32 s26, s16, 3')
    for i in range(4):
        p('s_add_u32 s%d, s%d, s26' % (34 + i, 30 + i))
    p('v_lshlrev_b32 v4, 3, v2')
    p('s_waitcnt lgkmcnt(0)')
    for j in range(8):
        p('buffer_load_dwordx2 %s, v4, s[8:11], s%d offen' % (v(8 + 2 * j, 2), 30 + j))
    p('s_lshl_b32 s26, s18, 10')
    p('v_lshrrev_b32 v5, 3, v2')
    p('v_and_b32 v6, 7, v2')
    p('v_lshlrev_b32 v6, 6, v6')
    p('v_mad_u32_u24 v5, v5, s26, v6')
    p('s_mul_i32 s27, s13, s18')
    p('s_lshl_b32 s27, s27, 3')
    p('s_add_u32 s27, s27, s14')
    p('s_lshl_b32 s27, s27, 10')
    p('s_lshl_b32 s28, s25, 9')
    p('s_add_u32 s27, s27, s28')
    p('s_add_u32 s27, s27, s17')
    p('s_mov_b32 s28, 0x05040100')
    p('s_mov_b32 s29, 0x07060302')
    p('s_waitcnt vmcnt(0)')
    for i in range(4):
        for m in range(4):
            lo = 8 + 2 * (2 * m) + (i >> 1)
            hi = 8 + 2 * (2 * m + 1) + (i >> 1)
            p('v_perm_b32 v%d, v%d, v%d, s%d' % (24 + 4 * i + m, hi, lo, 28 + (i & 1)))
        p('buffer_store_dwordx4 %s, v5, s[4:7], s27 offen offset:%d' % (v(24 + 4 * i, 4), 16 * i))
    p.label('prep_end')
    p('s_endpgm')
    return dict(name=name, grid=NX + NW, block=256, lds=0, vgpr=48, agpr=0)


def gen_lngemm(p, name, kind):
    qkv = kind == 'qkv'
    NT = 3 if qkv else 4
    NWG = 256 if qkv else 224
    ACT = X_F if qkv else X1_F
    STATS = ST_X if qkv else ST_X1
    ACC, XF = 64, 128
    R, C = 5, 6
    NBUF = 4
    kernel_head(p, name)
    vm = VM(p)
    p('s_cmp_ge_u32 s2, %d' % NWG)
    p('s_cbranch_scc1 %s_end' % name)
    ws_srd(p)
    if not qkv:
        p('s_load_dwordx2 s[24:25], s[0:1], 40')
        p('s_mov_b32 s26, 3584')
        p('s_mov_b32 s27, 0x00020000')
    p('v_lshrrev_b32 v1, 6, v0')
    p('v_and_b32 v7, 63, v0')
    p('v_readfirstlane_b32 s3, v1')
    p('v_lshlrev_b32 v1, 4, v7')
    p('v_lshlrev_b32 v2, 4, v0')
    p('v_add_u32 v4, 0x10000, v1')
    p('s_and_b32 s16, s2, 7')
    p('s_lshr_b32 s17, s2, 3')
    p('s_lshr_b32 s18, s16, 1')
    p('s_lshl_b32 s18, s18, 2')
    p('s_and_b32 s19, s17, 3')
    p('s_add_u32 s18, s18, s19')
    p('s_lshl_b32 s8, s18, 2')
    p('s_add_u32 s8, s8, s3')
    p('s_and_b32 s16, s16, 1')
    p('s_mul_i32 s16, s16, %d' % (8 if qkv else 7))
    p('s_lshr_b32 s17, s17, 2')
    p('s_add_u32 s9, s16, s17')
    p('v_lshrrev_b32 v8, 5, v7')
    p('v_and_b32 v9, 31, v7')
    p('v_lshlrev_b32 v10, 4, v9')
    p('v_lshl_add_u32 v10, v8, 11, v10')
    p('s_lshl_b32 s16, s8, 12')
    p('s_add_u32 s16, s16, 0x%x' % STATS)
    p('s_lshl_b32 s10, s8, 15')
    p('s_add_u32 s10, s10, 0x%x' % ACT)
    if qkv:
        p('s_lshl_b32 s11, s9, 15')
        for j in range(1, NT):
            p('s_add_u32 s%d, s11, 0x%x' % (11 + j, WQKV_F + j * 16 * 32768 - j * 1024))
        if WQKV_F:
            p('s_add_u32 s11, s11, 0x%x' % WQKV_F)
    else:
        p('s_lshl_b32 s11, s9, 17')
        for j in range(1, NT):
            p('s_add_u32 s%d, s11, 0x%x' % (11 + j, W1_F + j * 32768 - j * 1024))
        p('s_add_u32 s11, s11, 0x%x' % W1_F)
        p('v_lshlrev_b32 v11, 1, v9')
        p('v_lshl_add_u32 v11, v8, 16, v11')
        p('s_lshl_b32 s17, s9, 8')
    p('s_mul_i32 s15, s3, %d' % (NT * 1024))
    p('s_waitcnt lgkmcnt(0)')
    for i in range(4):
        vm.issue('buffer_load_dwordx4 %s, v10, s[4:7], s16 offen offset:%d' % (v(16 + 4 * i, 4), 512 * i), 'st')
    BIAS, ONES = 64, 80
    if not qkv:
        for j in range(NT):
            vm.issue('buffer_load_ushort a%d, v11, s[24:27], s17 offen offset:%d' % (BIAS + 4 * j, 64 * j), 'bias')
    for st in range(8):
        for kk in range(4):
            vm.issue('buffer_load_dwordx4 %s, v1, s[4:7], s10 offen offset:%d' % (v(XF + 4 * (4 * st + kk), 4), 1024 * kk),
                     'x%d' % st)
        p('s_mov_b32 m0, s15')
        if st < 7:
            p('s_add_u32 s10, s10, 4096')
            p('s_add_u32 s15, s15, %d' % (4 * NT * 1024))
        for j in range(NT):
            vm.issue('buffer_load_dwordx4 v2, s[4:7], s%d offen offset:%d lds' % (11 + j, 1024 * j), 'w%d' % st)
            if st < 7:
                p('s_add_u32 s%d, s%d, 4096' % (11 + j, 11 + j))
    if not qkv:
        for j in range(NT):
            for i in range(1, 4):
                p('v_accvgpr_write_b32 a%d, 0' % (BIAS + 4 * j + i))
        p('v_mov_b32 v12, 0x3f80')
        p('v_accvgpr_write_b32 a%d, v12' % ONES)
        for i in range(1, 4):
            p('v_accvgpr_write_b32 a%d, 0' % (ONES + i))
    vm.wait('st')
    for (d, x, y) in ((16, 16, 18), (20, 20, 22), (24, 24, 26), (28, 28, 30), (16, 16, 20), (24, 24, 28), (16, 16, 24)):
        p('v_pk_add_f32 %s, %s, %s' % (v(d, 2), v(x, 2), v(y, 2)))
    p('v_mov_b32 v18, v16')
    p('v_mov_b32 v19, v17')
    p('v_permlane32_swap_b32 v16, v18')
    p('v_permlane32_swap_b32 v17, v19')
    p('v_add_f32 v16, v16, v18')
    p('v_add_f32 v17, v17, v19')
    p('v_mul_f32 v16, %s, v16' % f2u(1.0 / 512))
    p('v_mul_f32 v17, %s, v17' % f2u(1.0 / 512))
    p('v_fma_f32 v17, -v16, v16, v17')
    p('v_max_f32 v17, 0, v17')
    p('v_add_f32 v18, %s, v17' % f2u(1e-5))
    p('v_rsq_f32 v%d, v18' % R)
    if not qkv:
        p('v_mul_f32 v18, v%d, v%d' % (R, R))
        p('v_mul_f32 v18, v18, v17')
        p('v_add_f32 v18, %s, v18' % f2u(1e-5))
        p('v_rsq_f32 v18, v18')
        p('v_mul_f32 v%d, v%d, v18' % (R, R))
    p('v_mul_f32 v%d, v16, v%d' % (C, R))
    p('v_sub_f32 v%d, 0, v%d' % (C, C))
    p('s_mov_b32 s20, 0xffff0000')
    if not qkv:
        vm.wait('bias')
        for j in range(NT):
            p('%s %s, %s, %s, 0' % (MFMA, v(ACC + 16 * j, 16), a_(BIAS + 4 * j, 4), a_(ONES, 4)))

    def norm(kb):
        out = []
        for i in range(4):
            d = XF + 4 * kb + i
            t = 8 + 2 * i
            out.append('v_lshlrev_b32 v%d, 16, v%d' % (t, d))
            out.append('v_and_b32 v%d, s20, v%d' % (t + 1, d))
        for i in range(4):
            t = 8 + 2 * i
            out.append('v_fma_f32 v%d, v%d, v%d, v%d' % (t, t, R, C))
            out.append('v_fma_f32 v%d, v%d, v%d, v%d' % (t + 1, t + 1, R, C))
        for i in range(4):
            d = XF + 4 * kb + i
            t = 8 + 2 * i
            out.append('v_cvt_pk_bf16_f32 v%d, v%d, v%d' % (d, t, t + 1))
        return out

    def wread(kb):
        for j in range(NT):
            off = (kb * NT + j) * 1024
            base = 'v1' if off < 65536 else 'v4'
            p('ds_read_b128 %s, %s offset:%d' % (a_(16 * (kb % NBUF) + 4 * j, 4), base, off & 0xffff))

    def mfmas(kb):
        out = []
        for j in range(NT):
            w = a_(16 * (kb % NBUF) + 4 * j, 4)
            x = v(XF + 4 * kb, 4)
            acc = v(ACC + 16 * j, 16)
            c = '0' if (qkv and kb == 0) else acc
            if qkv and j == 2:
                out.append('%s %s, %s, %s, %s' % (MFMA, acc, x, w, c))
            else:
                out.append('%s %s, %s, %s, %s' % (MFMA, acc, w, x, c))
        return out

    def interleave(ms, vs):
        n = len(ms)
        per = -(-len(vs) // n)
        for i, m in enumerate(ms):
            p(m)
            for t in vs[i * per:(i + 1) * per]:
                p(t)

    vm.wait('x0')
    for t in norm(0):
        p(t)
    for st in range(8):
        vm.wait('w%d' % st)
        p('s_barrier')
        k0 = 4 * st
        wread(k0)
        wread(k0 + 1)
        wread(k0 + 2)
        p('s_waitcnt lgkmcnt(%d)' % (2 * NT))
        interleave(mfmas(k0), norm(k0 + 1))
        wread(k0 + 3)
        p('s_waitcnt lgkmcnt(%d)' % (2 * NT))
        interleave(mfmas(k0 + 1), norm(k0 + 2))
        p('s_waitcnt lgkmcnt(%d)' % NT)
        interleave(mfmas(k0 + 2), norm(k0 + 3))
        p('s_waitcnt lgkmcnt(0)')
        for m in mfmas(k0 + 3):
            p(m)
        if st < 7:
            vm.wait('x%d' % (st + 1))
            for t in norm(k0 + 4):
                p(t)
    if qkv:
        p('s_lshl_b32 s16, s9, 17')
        p('s_lshl_b32 s17, s8, 10')
        p('s_add_u32 s16, s16, s17')
        p('s_add_u32 s17, s16, 0x%x' % Q_F)
        p('s_add_u32 s18, s16, 0x%x' % (Q_F + 65536))
        p('s_add_u32 s19, s16, 0x%x' % K_F)
        p('s_add_u32 s21, s16, 0x%x' % (K_F + 65536))
        p('s_add_u32 s22, s16, 0x%x' % VT_F)
        p('v_and_b32 v8, 15, v7')
        p('v_lshlrev_b32 v8, 4, v8')
        p('v_lshrrev_b32 v9, 5, v7')
        p('v_lshl_add_u32 v8, v9, 8, v8')
        p('v_bfe_u32 v9, v7, 4, 1')
        p('v_lshl_add_u32 v8, v9, 16, v8')
        p('v_mov_b32 v10, %s' % f2u(0.25 * 1.4426950408889634))
        p('v_mov_b32 v11, v10')
        for i in range(8):
            r = ACC + 2 * i
            p('v_pk_mul_f32 %s, %s, v[10:11]' % (v(r, 2), v(r, 2)))
        for j in range(3):
            for i in range(8):
                r = ACC + 16 * j + 2 * i
                p('v_cvt_pk_bf16_f32 v%d, v%d, v%d' % (16 + 8 * j + i, r, r + 1))
            if j == 0:
                p('buffer_store_dwordx4 v[16:19], v1, s[4:7], s17 offen')
                p('buffer_store_dwordx4 v[20:23], v1, s[4:7], s18 offen')
            elif j == 1:
                p('buffer_store_dwordx4 v[24:27], v1, s[4:7], s19 offen')
                p('buffer_store_dwordx4 v[28:31], v1, s[4:7], s21 offen')
            else:
                p('buffer_store_dwordx4 v[32:35], v8, s[4:7], s22 offen')
                p('buffer_store_dwordx4 v[36:39], v8, s[4:7], s22 offen offset:512')
    else:
        k0c = -2.0 * 0.7978845608028654 * 1.4426950408889634
        k1c = k0c * 0.044715
        p('s_mul_i32 s16, s8, %d' % (112 * 1024))
        p('s_lshl_b32 s17, s9, 13')
        p('s_add_u32 s16, s16, s17')
        p('s_add_u32 s16, s16, 0x%x' % H_F)
        p('s_add_u32 s17, s16, 4096')
        p('v_mov_b32 v8, %s' % f2u(k0c))
        p('v_mov_b32 v9, v8')
        p('v_mov_b32 v10, %s' % f2u(k1c))
        p('v_mov_b32 v11, v10')
        p('v_mov_b32 v12, 1.0')
        p('v_mov_b32 v13, 1.0')
        T = XF
        for g in range(2 * NT):
            r0 = ACC + 8 * g
            t0 = T + 8 * (g % 4)
            o0 = 16 + 4 * (g % 4)
            for i in range(4):
                p('v_pk_mul_f32 %s, %s, %s' % (v(t0 + 2 * i, 2), v(r0 + 2 * i, 2), v(r0 + 2 * i, 2)))
            for i in range(4):
                p('v_pk_fma_f32 %s, %s, v[10:11], v[8:9]' % (v(t0 + 2 * i, 2), v(t0 + 2 * i, 2)))
            for i in range(4):
                p('v_pk_mul_f32 %s, %s, %s' % (v(t0 + 2 * i, 2), v(t0 + 2 * i, 2), v(r0 + 2 * i, 2)))
            for i in range(8):
                p('v_exp_f32 v%d, v%d' % (t0 + i, t0 + i))
            for i in range(4):
                p('v_pk_add_f32 %s, %s, v[12:13]' % (v(t0 + 2 * i, 2), v(t0 + 2 * i, 2)))
            for i in range(8):
                p('v_rcp_f32 v%d, v%d' % (t0 + i, t0 + i))
            for i in range(4):
                p('v_pk_mul_f32 %s, %s, %s' % (v(t0 + 2 * i, 2), v(t0 + 2 * i, 2), v(r0 + 2 * i, 2)))
            for i in range(4):
                p('v_cvt_pk_bf16_f32 v%d, v%d, v%d' % (o0 + i, t0 + 2 * i, t0 + 2 * i + 1))
            p('buffer_store_dwordx4 %s, v1, s[4:7], s%d offen offset:%d' % (v(o0, 4), 16 + (g >> 2), 1024 * (g & 3)))
    p.label('%s_end' % name)
    p('s_endpgm')
    return dict(name=name, grid=NWG, block=256, lds=NT * 32768, vgpr=256, agpr=96)


def gen_attn(p, name):
    Q, KF, VB, P0, P1 = 4, 8, 12, 28, 32
    SB, O, CN = 48, 80, 96
    KA, VA = 36, 37
    U = 4
    kernel_head(p, name)
    vm = VM(p)
    p('s_cmp_ge_u32 s2, 256')
    p('s_cbranch_scc1 attn_end')
    ws_srd(p)
    p('v_lshrrev_b32 v1, 6, v0')
    p('v_and_b32 v3, 63, v0')
    p('v_readfirstlane_b32 s3, v1')
    p('v_lshlrev_b32 v1, 4, v3')
    p('v_lshlrev_b32 v38, 4, v0')
    p('s_and_b32 s8, s2, 7')
    p('s_lshl_b32 s8, s8, 2')
    p('s_bfe_u32 s9, s2, 0x20003')
    p('s_add_u32 s8, s8, s9')
    p('s_lshr_b32 s9, s2, 5')
    p('s_lshl_b32 s9, s9, 3')
    p('s_add_u32 s9, s9, s3')
    p('s_lshl_b32 s10, s8, 16')
    p('s_lshl_b32 s11, s9, 10')
    p('s_add_u32 s11, s11, s10')
    p('s_add_u32 s11, s11, 0x%x' % Q_F)
    p('s_add_u32 s12, s10, 0x%x' % K_F)
    p('s_add_u32 s13, s10, 0x%x' % VT_F)
    p('s_lshl_b32 s14, s3, 10')
    p('s_add_u32 s15, s14, 0x10000')
    p('s_waitcnt lgkmcnt(0)')
    vm.issue('buffer_load_dwordx4 %s, v1, s[4:7], s11 offen' % v(Q, 4), 'q')
    for n in range(8):
        p('s_mov_b32 m0, s14')
        if n < 7:
            p('s_add_u32 s14, s14, 8192')
        vm.issue('buffer_load_dwordx4 v38, s[4:7], s12 offen lds', 'c%d' % n)
        p('s_mov_b32 m0, s15')
        if n < 7:
            p('s_add_u32 s15, s15, 8192')
            p('s_add_u32 s12, s12, 8192')
        vm.issue('buffer_load_dwordx4 v38, s[4:7], s13 offen lds', 'c%d' % n)
        if n < 7:
            p('s_add_u32 s13, s13, 8192')
    p('v_and_b32 v2, 15, v3')
    p('v_lshlrev_b32 v2, 4, v2')
    p('v_lshrrev_b32 v39, 5, v3')
    p('v_lshl_add_u32 v2, v39, 8, v2')
    p('v_add_u32 v2, 0x10000, v2')
    p('v_mov_b32 v39, 0x3f803f80')
    for i in range(16):
        p('v_mov_b32 v%d, v39' % (VB + i))
    for i in range(16):
        p('v_mov_b32 v%d, 0' % (CN + i))
    p('s_mov_b32 s20, 0x0000ffff')
    p('s_mov_b32 s21, 0x0000ffff')
    p('s_mov_b32 s17, 1')
    p('s_mov_b32 s18, 0')
    vm.wait('c0')
    p('s_barrier')

    def vread(buf, off):
        p('s_mov_b64 exec, s[20:21]')
        p('ds_read_b128 %s, v%d offset:%d' % (v(VB + 8 * buf, 4), VA, off))
        p('ds_read_b128 %s, v%d offset:%d' % (v(VB + 8 * buf + 4, 4), VA, off + 512))
        p('s_mov_b64 exec, -1')

    p.label('attn_pass')
    p('v_mov_b32 v%d, v1' % KA)
    p('v_mov_b32 v%d, v2' % VA)
    p('ds_read_b128 %s, v%d' % (v(KF, 4), KA))
    vread(0, 0)
    for i in range(16):
        p('v_mov_b32 v%d, 0' % (O + i))
    for i in range(4):
        p('v_mov_b32 v%d, 0' % (P1 + i))
    p('s_mov_b32 s16, 0')
    p('s_waitcnt lgkmcnt(0)')
    p('%s %s, %s, %s, %s' % (MFMA, v(SB, 16), v(KF, 4), v(Q, 4), v(CN, 16)))
    p('ds_read_b128 %s, v%d offset:1024' % (v(KF, 4), KA))
    p.label('attn_loop')
    p('s_cmp_eq_u32 s16, s17')
    p('s_cbranch_scc1 attn_sync')
    p.label('attn_body')
    for u in range(U):
        cur = SB + 16 * (u & 1)
        nxt = SB + 16 * ((u + 1) & 1)
        vc = VB + 8 * (u & 1)
        vp = VB + 8 * ((u + 1) & 1)
        p('s_waitcnt lgkmcnt(0)')
        p('%s %s, %s, %s, %s' % (MFMA, v(nxt, 16), v(KF, 4), v(Q, 4), v(CN, 16)))
        p('ds_read_b128 %s, v%d offset:%d' % (v(KF, 4), KA, 1024 * (u + 2)))
        for i in range(4):
            p('v_exp_f32 v%d, v%d' % (cur + i, cur + i))
        p('%s %s, %s, %s, %s' % (MFMA, v(O, 16), v(vp + 4, 4), v(P1, 4), v(O, 16)))
        vread((u + 1) & 1, 1024 * (u + 1))
        for i in range(4, 8):
            p('v_exp_f32 v%d, v%d' % (cur + i, cur + i))
        for i in range(4):
            p('v_cvt_pk_bf16_f32 v%d, v%d, v%d' % (P0 + i, cur + 2 * i, cur + 2 * i + 1))
        for i in range(8, 10):
            p('v_exp_f32 v%d, v%d' % (cur + i, cur + i))
        p('%s %s, %s, %s, %s' % (MFMA, v(O, 16), v(vc, 4), v(P0, 4), v(O, 16)))
        for i in range(10, 16):
            p('v_exp_f32 v%d, v%d' % (cur + i, cur + i))
        if u == U - 1:
            p('v_add_u32 v%d, %d, v%d' % (KA, 1024 * U, KA))
            p('v_add_u32 v%d, %d, v%d' % (VA, 1024 * U, VA))
            p('s_add_u32 s16, s16, 1')
            p('s_cmp_lt_u32 s16, %d' % (64 // U))
        for i in range(4):
            p('v_cvt_pk_bf16_f32 v%d, v%d, v%d' % (P1 + i, cur + 8 + 2 * i, cur + 8 + 2 * i + 1))
    p('s_cbranch_scc1 attn_loop')
    last = VB + 8 * ((U - 1) & 1)
    p('%s %s, %s, %s, %s' % (MFMA, v(O, 16), v(last + 4, 4), v(P1, 4), v(O, 16)))
    p('s_lshl_b32 s11, s9, 5')
    p('s_add_u32 s11, s11, s8')
    p('s_lshl_b32 s11, s11, 10')
    p('s_add_u32 s11, s11, 0x%x' % O_F)
    p('s_waitcnt lgkmcnt(0)')
    p('v_rcp_f32 v40, v%d' % (O + 8))
    p('v_mov_b32 v41, 0')
    for i in range(8):
        p('v_mul_f32 v%d, v%d, v40' % (O + i, O + i))
    p('s_cmp_lg_u32 s18, 0')
    p('s_cbranch_scc1 attn_store')
    for i in range(8):
        p('v_fma_f32 v41, v%d, 0, v41' % (O + i))
    p('v_cmp_nle_f32 vcc, %s, v%d' % (f2u(2.0 ** -60), O + 8))
    p('v_cmp_nge_f32 s[22:23], %s, v%d' % ('s24', O + 8)) if False else None
    p('v_mov_b32 v42, %s' % f2u(2.0 ** 40))
    p('v_cmp_nge_f32 s[22:23], v42, v%d' % (O + 8))
    p('v_cmp_u_f32 s[24:25], v41, v41')
    p('s_nop 4')
    p('s_or_b64 s[22:23], s[22:23], vcc')
    p('s_or_b64 s[22:23], s[22:23], s[24:25]')
    p('s_cbranch_scc1 attn_slow')
    p.label('attn_store')
    for i in range(4):
        p('v_cvt_pk_bf16_f32 v%d, v%d, v%d' % (P0 + i, O + 2 * i, O + 2 * i + 1))
    p('buffer_store_dwordx4 %s, v1, s[4:7], s11 offen' % v(P0, 4))
    p.label('attn_end')
    p('s_endpgm')
    p.label('attn_sync')
    p('s_cmp_eq_u32 s17, 1')
    p('s_cbranch_scc0 attn_sync2')
    vm.wait('c2')
    p('s_mov_b32 s17, 5')
    p('s_barrier')
    p('s_branch attn_body')
    p.label('attn_sync2')
    p('s_waitcnt vmcnt(0)')
    p('s_mov_b32 s17, -1')
    p('s_barrier')
    p('s_branch attn_body')
    p.label('attn_slow')
    p('v_mov_b32 v%d, v1' % KA)
    p('v_mov_b32 v40, 0xff800000')
    p('s_mov_b32 s16, 0')
    p.label('attn_mx')
    p('ds_read_b128 %s, v%d' % (v(KF, 4), KA))
    p('v_add_u32 v%d, 1024, v%d' % (KA, KA))
    p('s_waitcnt lgkmcnt(0)')
    p('%s %s, %s, %s, 0' % (MFMA, v(SB, 16), v(KF, 4), v(Q, 4)))
    p('s_add_u32 s16, s16, 1')
    p('s_cmp_lt_u32 s16, 64')
    for i in range(8):
        p('v_max3_f32 v40, v40, v%d, v%d' % (SB + 2 * i, SB + 2 * i + 1))
    p('s_cbranch_scc1 attn_mx')
    p('v_mov_b32 v41, v40')
    p('v_permlane32_swap_b32 v40, v41')
    p('v_max_f32 v40, v40, v41')
    for i in range(16):
        p('v_sub_f32 v%d, 0, v40' % (CN + i))
    p('s_mov_b32 s18, 1')
    p('s_branch attn_pass')
    return dict(name=name, grid=256, block=512, lds=131072, vgpr=128, agpr=0)


def gen_resgemm(p, names, kind):
    wo = kind == 'wo'
    KB = 32 if wo else 112
    KW = KB // 4
    RING = min(KW, 14)
    ACT = O_F if wo else H_F
    WF = WO_F if wo else W2_F
    RES = X_F if wo else X1_F
    OUT = X1_F if wo else X_F
    STATS = ST_X1 if wo else ST_X
    ACC = 64
    RX, ID, BI, ON = 32, 40, 48, 52
    name = names[0]
    if not wo:
        kernel_head(p, names[1])
        p('s_mov_b32 s30, 1')
        p('s_branch %s_go' % name)
    kernel_head(p, name)
    p('s_mov_b32 s30, 0')
    p.label('%s_go' % name)
    vm = VM(p)
    p('s_cmp_ge_u32 s2, 256')
    p('s_cbranch_scc1 %s_end' % name)
    ws_srd(p)
    if not wo:
        p('s_load_dwordx2 s[24:25], s[0:1], 56')
        p('s_load_dwordx2 s[32:33], s[0:1], 64')
        p('s_mov_b32 s26, 1024')
        p('s_mov_b32 s27, 0x00020000')
        p('s_mov_b32 s34, 0x200000')
        p('s_mov_b32 s35, 0x00020000')
    p('v_lshrrev_b32 v1, 6, v0')
    p('v_and_b32 v7, 63, v0')
    p('v_readfirstlane_b32 s3, v1')
    p('v_lshlrev_b32 v1, 4, v7')
    p('s_and_b32 s16, s2, 7')
    p('s_lshr_b32 s17, s2, 3')
    p('s_lshr_b32 s18, s16, 1')
    p('s_lshl_b32 s18, s18, 3')
    p('s_and_b32 s19, s17, 7')
    p('s_add_u32 s18, s18, s19')
    p('s_and_b32 s16, s16, 1')
    p('s_lshl_b32 s16, s16, 2')
    p('s_lshr_b32 s17, s17, 3')
    p('s_add_u32 s19, s16, s17')
    p('s_and_b32 s16, s3, 1')
    p('s_lshr_b32 s17, s3, 1')
    p('s_lshl_b32 s8, s18, 1')
    p('s_add_u32 s8, s8, s16')
    p('s_lshl_b32 s9, s19, 1')
    p('s_add_u32 s9, s9, s17')
    p('s_xor_b32 s16, s8, 1')
    p('s_xor_b32 s17, s9, 1')
    p('s_mul_i32 s21, s3, %d' % (KW * 1024))
    for d, src, base in ((10, 8, ACT), (11, 16, ACT), (12, 9, WF), (13, 17, WF)):
        p('s_mul_i32 s%d, s%d, %d' % (d, src, KB * 1024))
        p('s_add_u32 s%d, s%d, s21' % (d, d))
        p('s_add_u32 s%d, s%d, 0x%x' % (d, d, base))
    p('s_lshl_b32 s14, s8, 15')
    p('s_lshl_b32 s15, s9, 11')
    p('s_add_u32 s14, s14, s15')
    p('s_add_u32 s15, s14, 0x%x' % RES)
    p('v_lshrrev_b32 v8, 5, v7')
    p('v_and_b32 v9, 31, v7')
    if not wo:
        p('v_lshlrev_b32 v11, 1, v9')
        p('v_lshl_add_u32 v11, v8, 16, v11')
        p('s_lshl_b32 s22, s9, 6')
    p('s_waitcnt lgkmcnt(0)')
    for m in range(2):
        vm.issue('buffer_load_dwordx4 %s, v1, s[4:7], s15 offen offset:%d' % (v(RX + 4 * m, 4), 1024 * m), 'res')
    if not wo:
        vm.issue('buffer_load_ushort v%d, v11, s[24:27], s22 offen' % BI, 'res')

    def loads(kb):
        sl = 16 * (kb % RING)
        for i in range(4):
            vm.issue('buffer_load_dwordx4 %s, v1, s[4:7], s%d offen offset:%d' % (a_(sl + 4 * i, 4), 10 + i, 1024 * (kb & 3)),
                     'k%d' % kb)
        if (kb & 3) == 3 and kb < KW - 1:
            for i in range(4):
                p('s_add_u32 s%d, s%d, 4096' % (10 + i, 10 + i))

    for kb in range(RING):
        loads(kb)
    p('v_lshlrev_b32 v10, 2, v8')
    p('v_sub_u32 v10, v9, v10')
    p('v_mov_b32 v12, 0x3f80')
    for m in range(2):
        for i in range(4):
            k0 = 16 * m + (i & 1) * 2 + (i >> 1) * 8
            d = ID + 4 * m + i
            p('v_subrev_u32 v13, %d, v10' % k0)
            p('v_cmp_gt_u32 vcc, 2, v13')
            p('v_lshlrev_b32 v13, 4, v13')
            p('v_lshlrev_b32 v13, v13, v12')
            p('v_cndmask_b32 v%d, 0, v13, vcc' % d)
    if not wo:
        for i in range(1, 4):
            p('v_mov_b32 v%d, 0' % (BI + i))
            p('v_mov_b32 v%d, 0' % (ON + i))
        p('v_mov_b32 v%d, v12' % ON)
    for sidx in (1, 2, 3):
        p('s_xor_b32 s16, s3, %d' % sidx)
        p('s_mul_i32 s16, s16, 12288')
        p('s_add_u32 s16, s16, %d' % ((sidx - 1) * 4096))
        p('v_add_u32 v%d, s16, v1' % (1 + sidx))
    p('s_mul_i32 s16, s3, 12288')
    p('v_add_u32 v5, s16, v1')
    vm.wait('res')
    p('%s %s, %s, %s, 0' % (MFMA, v(ACC, 16), v(ID, 4), v(RX, 4)))
    p('%s %s, %s, %s, %s' % (MFMA, v(ACC, 16), v(ID + 4, 4), v(RX + 4, 4), v(ACC, 16)))
    if not wo:
        p('%s %s, %s, %s, %s' % (MFMA, v(ACC, 16), v(BI, 4), v(ON, 4), v(ACC, 16)))
    for kb in range(KW):
        sl = 16 * (kb % RING)
        vm.wait('k%d' % kb)
        for sidx in (1, 2, 3, 0):
            aa, bb = sidx & 1, sidx >> 1
            acc = v(ACC + 16 * sidx, 16)
            c = '0' if (kb == 0 and sidx) else acc
            p('%s %s, %s, %s, %s' % (MFMA, acc, a_(sl + 8 + 4 * bb, 4), a_(sl + 4 * aa, 4), c))
        if kb + RING < KW:
            loads(kb + RING)
    for sidx in (1, 2, 3):
        for q in range(4):
            p('ds_write_b128 v%d, %s offset:%d' % (1 + sidx, v(ACC + 16 * sidx + 4 * q, 4), 1024 * q))
    p('s_waitcnt lgkmcnt(0)')
    p('s_barrier')
    T = 128
    for i in range(12):
        p('ds_read_b128 %s, v5 offset:%d' % (v(T + 4 * i, 4), 1024 * i))
    p('s_add_u32 s15, s14, 0x%x' % OUT)
    p('s_mov_b32 s19, 0x3f803f80')
    p('v_mov_b32 v24, 0')
    p('v_mov_b32 v25, 0')
    for sidx in range(3):
        p('s_waitcnt lgkmcnt(%d)' % (8 - 4 * sidx))
        for i in range(8):
            p('v_pk_add_f32 %s, %s, %s' % (v(ACC + 2 * i, 2), v(ACC + 2 * i, 2), v(T + 16 * sidx + 2 * i, 2)))
    for i in range(8):
        p('v_cvt_pk_bf16_f32 v%d, v%d, v%d' % (16 + i, ACC + 2 * i, ACC + 2 * i + 1))
    if not wo:
        p('s_cmp_lg_u32 s30, 0')
        p('s_cbranch_scc1 %s_last' % name)
    p('buffer_store_dwordx4 v[16:19], v1, s[4:7], s15 offen')
    p('buffer_store_dwordx4 v[20:23], v1, s[4:7], s15 offen offset:1024')
    for i in range(8):
        p('v_dot2_f32_bf16 v24, v%d, s19, v24' % (16 + i))
        p('v_dot2_f32_bf16 v25, v%d, v%d, v25' % (16 + i, 16 + i))
    p('s_lshl_b32 s16, s8, 12')
    p('s_lshr_b32 s17, s9, 1')
    p('s_lshl_b32 s17, s17, 9')
    p('s_add_u32 s16, s16, s17')
    p('s_and_b32 s17, s9, 1')
    p('s_lshl_b32 s17, s17, 3')
    p('s_add_u32 s16, s16, s17')
    p('s_add_u32 s16, s16, 0x%x' % STATS)
    p('v_lshlrev_b32 v10, 4, v9')
    p('v_mov_b32 v26, v24')
    p('v_mov_b32 v27, v25')
    p('v_permlane32_swap_b32 v24, v26')
    p('v_permlane32_swap_b32 v25, v27')
    p('v_add_f32 v24, v24, v26')
    p('v_add_f32 v25, v25, v27')
    p('buffer_store_dwordx2 v[24:25], v10, s[4:7], s16 offen')
    p.label('%s_end' % name)
    p('s_endpgm')
    if not wo:
        p.label('%s_last' % name)
        p('v_lshlrev_b32 v10, 10, v9')
        p('v_lshl_add_u32 v10, v8, 4, v10')
        p('s_lshl_b32 s16, s8, 15')
        p('s_lshl_b32 s17, s9, 6')
        p('s_add_u32 s16, s16, s17')
        for m in range(2):
            b = 16 + 4 * m
            p('v_permlane32_swap_b32 v%d, v%d' % (b, b + 2))
            p('v_permlane32_swap_b32 v%d, v%d' % (b + 1, b + 3))
        p('buffer_store_dwordx4 v[16:19], v10, s[32:35], s16 offen')
        p('buffer_store_dwordx4 v[20:23], v10, s[32:35], s16 offen offset:32')
        p('s_endpgm')
    return [dict(name=n, grid=256, block=256, lds=49152, vgpr=256, agpr=16 * RING) for n in names]


def build(out_path, extra_noop=0):
    p = Prog()
    ks = {}
    k = gen_prep(p, MAIN + '_kernel')
    ks['prep'] = k
    p('.p2align 8')
    p.label('code_begin')
    ks['qkv'] = gen_lngemm(p, 'qkv_kernel', 'qkv')
    ks['attn'] = gen_attn(p, 'attn_kernel')
    ks['wo'] = gen_resgemm(p, ['wo_kernel'], 'wo')[0]
    ks['mlp1'] = gen_lngemm(p, 'mlp1_kernel', 'mlp1')
    ks['mlp2'], ks['mlp2l'] = gen_resgemm(p, ['mlp2_kernel', 'mlp2l_kernel'], 'mlp2')
    p.label('code_end')
    if extra_noop:
        kernel_head(p, 'noop_kernel')
        p('s_endpgm')
        ks['noop'] = dict(name='noop_kernel', grid=256, block=256, lds=0, vgpr=8, agpr=0)
    p.fix()
    order = ['prep', 'qkv', 'attn', 'wo', 'mlp1', 'mlp2', 'qkv', 'attn', 'wo', 'mlp1', 'mlp2l'] + ['noop'] * extra_noop
    head = ['; generated by gen/gen.py -- kernel list for ' + MAIN]
    for o in order:
        k = ks[o]
        head.append('; @launch kernel=%s grid=(%d,1,1) block=(%d,1,1) lds=%d' % (k['name'], k['grid'], k['block'], k['lds']))
    head += ['.amdgcn_target "amdgcn-amd-amdhsa--gfx950"', '.text']
    for k in ks.values():
        head.append('.globl %s' % k['name'])
    tail = ['.section .rodata,"a"']
    for k in ks.values():
        acc = -(-k['vgpr'] // 4) * 4
        tot = acc + k['agpr'] if k['agpr'] else k['vgpr']
        tail += ['.p2align 6',
                 '.amdhsa_kernel %s' % k['name'],
                 '  .amdhsa_next_free_vgpr %d' % tot,
                 '  .amdhsa_next_free_sgpr 102',
                 '  .amdhsa_accum_offset %d' % acc,
                 '  .amdhsa_group_segment_fixed_size 0',
                 '  .amdhsa_kernarg_size 88',
                 '  .amdhsa_user_sgpr_count 2',
                 '  .amdhsa_user_sgpr_kernarg_segment_ptr 1',
                 '  .amdhsa_system_sgpr_workgroup_id_x 1',
                 '.end_amdhsa_kernel']
    with open(out_path, 'w') as f:
        f.write('\n'.join(head) + '\n' + p.text() + '\n'.join(tail) + '\n')


if __name__ == '__main__':
    out = sys.argv[1] if len(sys.argv) > 1 else 'cdna_kernels/%s.s' % MAIN
    noop = int(sys.argv[2]) if len(sys.argv) > 2 else 0
    build(out, noop)
```

```python
from asmlib import v, a_, s

LB, CB, SC_, SM, HEAD, QB = 8, 9, 10, 11, 12, 13
TH, KH, SIG, POL, LAYER = 14, 15, 16, 17, 18
SWQ, SLW, SRES, SST = 28, 29, 30, 31
TOKB, FEAB = 32, 33
L16, L16B, VST, VVS, VT16, VP, LANE = 1, 2, 3, 4, 5, 6, 7
RES = 8
PAIR = 4112
KVB = 1024
XCH = 0x24000
RED = 0x18000


def gen_main(p, name, G):
    MFMA, SC, f2u, mark, OPT = G.MFMA, G.SC, G.f2u, G.mark, G.OPT
    LD = 'buffer_load_dwordx4'
    STO = 'buffer_store_dwordx4'
    uid = [0]

    def lab(x):
        uid[0] += 1
        return 'L%s%d' % (x, uid[0])

    def mf(d, a, b, c):
        return '%s %s, %s, %s, %s' % (MFMA, d, a, b, c)

    def signal():
        p('s_waitcnt vmcnt(0)')
        p('s_barrier')
        l = lab('sig')
        p('s_cmp_lg_u32 s3, 0')
        p('s_cbranch_scc1 %s' % l)
        p('s_mov_b64 exec, 1')
        p('v_mov_b32 v%d, 1' % VP)
        p('buffer_atomic_add v%d, off, s[4:7], s%d sc1' % (VP, SIG))
        p('s_mov_b64 exec, -1')
        p.label(l)

    def wait_ctr(target, skip0=False):
        l, e = lab('poll'), lab('pend')
        p('s_cmp_lg_u32 s3, 1')
        p('s_cbranch_scc1 %s' % e)
        if skip0:
            p('s_cmp_eq_u32 s%d, 0' % LAYER)
            p('s_cbranch_scc1 %s' % e)
        p('s_mov_b32 s34, 0x8000')
        p.label(l)
        p('buffer_load_dword v%d, off, s[4:7], s%d sc1' % (VP, POL))
        p('s_waitcnt vmcnt(0)')
        p('v_readfirstlane_b32 s35, v%d' % VP)
        p('s_cmp_ge_u32 s35, %d' % target)
        p('s_cbranch_scc1 %s' % e)
        p('s_sleep 1')
        p('s_sub_u32 s34, s34, 1')
        p('s_cmp_lg_u32 s34, 0')
        p('s_cbranch_scc1 %s' % l)
        p.label(e)
        p('s_barrier')

    def ctr_addr(dst, kind, idx, shift=0, prev=False):
        if shift:
            p('s_lshr_b32 s%d, s%d, %d' % (dst, idx, shift))
            p('s_lshl_b32 s%d, s%d, 8' % (dst, dst))
        else:
            p('s_lshl_b32 s%d, s%d, 8' % (dst, idx))
        p('s_add_u32 s%d, s%d, s%d' % (dst, dst, CB))
        off = kind * G.CK - (G.CL if prev else 0)
        if off >= 0:
            p('s_add_u32 s%d, s%d, 0x%x' % (dst, dst, off))
        else:
            p('s_sub_u32 s%d, s%d, 0x%x' % (dst, dst, -off))

    def wqkv_dma():
        out = []
        for g in range(6):
            j, hf = g >> 1, g & 1
            for i in range(4):
                pre = []
                if i == 0:
                    pre = ['s_add_u32 m0, s%d, 0x%x' % (SLW, j * 32768 + hf * 4096),
                           's_add_u32 s36, s%d, 0x%x' % (SWQ, j * 16 * 32768 + hf * 4096)]
                out.append((pre, '%s v%d, s[4:7], s36 offen offset:%d lds' % (LD, L16, 1024 * i)))
        return out

    def stats_math(b, tf, dbl):
        o = []
        for (d, x, y) in ((0, 0, 2), (4, 4, 6), (8, 8, 10), (12, 12, 14), (0, 0, 4), (8, 8, 12), (0, 0, 8)):
            o.append('v_pk_add_f32 %s, %s, %s' % (v(b + d, 2), v(b + x, 2), v(b + y, 2)))
        o += ['v_mov_b32 v%d, v%d' % (b + 2, b),
              'v_mov_b32 v%d, v%d' % (b + 3, b + 1),
              'v_permlane32_swap_b32 v%d, v%d' % (b, b + 2),
              'v_permlane32_swap_b32 v%d, v%d' % (b + 1, b + 3),
              'v_add_f32 v%d, v%d, v%d' % (b, b, b + 2),
              'v_add_f32 v%d, v%d, v%d' % (b + 1, b + 1, b + 3),
              'v_mul_f32 v%d, %s, v%d' % (b, f2u(-1.0 / 512), b),
              'v_mul_f32 v%d, %s, v%d' % (b + 1, f2u(1.0 / 512), b + 1),
              'v_fma_f32 v%d, -v%d, v%d, v%d' % (b + 1, b, b, b + 1),
              'v_max_f32 v%d, 0, v%d' % (b + 1, b + 1),
              'v_add_f32 v%d, %s, v%d' % (b + 4, f2u(1e-5), b + 1),
              'v_rsq_f32 v%d, v%d' % (b + 2, b + 4),
              'v_cvt_pk_bf16_f32 v%d, v%d, v%d' % (tf, b, b)]
        if dbl:
            o += ['v_mul_f32 v%d, v%d, v%d' % (b + 4, b + 2, b + 2),
                  'v_mul_f32 v%d, v%d, v%d' % (b + 4, b + 4, b + 1),
                  'v_add_f32 v%d, %s, v%d' % (b + 4, f2u(1e-5), b + 4),
                  'v_rsq_f32 v%d, v%d' % (b + 4, b + 4),
                  'v_lshlrev_b32 v%d, 16, v%d' % (b + 5, tf),
                  'v_mul_f32 v%d, v%d, v%d' % (b + 2, b + 2, b + 4)]
        else:
            o += ['v_lshlrev_b32 v%d, 16, v%d' % (b + 5, tf)]
        o += ['v_rcp_f32 v%d, v%d' % (b + 3, b + 2),
              'v_sub_f32 v%d, v%d, v%d' % (b + 5, b, b + 5),
              'v_cvt_pk_bf16_f32 v%d, v%d, v%d' % (b + 6, b + 2, b + 2),
              'v_cvt_pk_bf16_f32 v%d, v%d, v%d' % (tf + 1, b + 5, b + 3),
              'v_lshlrev_b32 v%d, 16, v%d' % (b + 6, b + 6),
              'v_and_b32 v%d, 0xffff0000, v%d' % (b + 5, tf + 1),
              'v_sub_f32 v%d, v%d, v%d' % (b + 6, b + 2, b + 6),
              'v_sub_f32 v%d, v%d, v%d' % (b + 5, b + 3, b + 5),
              'v_cvt_pk_bf16_f32 v%d, v%d, v%d' % (tf + 3, b + 2, b + 6),
              'v_cvt_pk_bf16_f32 v%d, v%d, 0' % (tf + 2, b + 5)]
        return o

    def unpack(dst, src, n):
        o = []
        for i in range(n):
            o.append('v_lshlrev_b32 v%d, 16, v%d' % (dst + 2 * i, src + i))
            o.append('v_and_b32 v%d, 0xffff0000, v%d' % (dst + 2 * i + 1, src + i))
        return o

    def tile_out(acc, soff, sst, t):
        for i in range(8):
            p('v_cvt_pk_bf16_f32 v%d, v%d, v%d' % (RES + i, acc + 2 * i, acc + 2 * i + 1))
            if i == 3:
                p('%s %s, v%d, s[4:7], s%d offen%s' % (STO, v(RES, 4), L16, soff, SC))
        p('%s %s, v%d, s[4:7], s%d offen offset:1024%s' % (STO, v(RES + 4, 4), L16, soff, SC))
        p('s_mov_b32 s34, 0x3f803f80')
        p('v_dot2_f32_bf16 v%d, v%d, s34, 0' % (t, RES))
        p('v_dot2_f32_bf16 v%d, v%d, v%d, 0' % (t + 1, RES, RES))
        for i in range(1, 8):
            p('v_dot2_f32_bf16 v%d, v%d, s34, v%d' % (t, RES + i, t))
            p('v_dot2_f32_bf16 v%d, v%d, v%d, v%d' % (t + 1, RES + i, RES + i, t + 1))
        p('v_mov_b32 v%d, v%d' % (t + 2, t))
        p('v_mov_b32 v%d, v%d' % (t + 3, t + 1))
        p('v_permlane32_swap_b32 v%d, v%d' % (t, t + 2))
        p('v_permlane32_swap_b32 v%d, v%d' % (t + 1, t + 3))
        p('v_pk_add_f32 %s, %s, %s' % (v(t, 2), v(t, 2), v(t + 2, 2)))
        p('buffer_store_dwordx2 %s, v%d, s[4:7], s%d offen%s' % (v(t, 2), VT16, sst, SC))

    G.kernel_head(p, name)
    if G.TS:
        for i in range(G.NST):
            p('s_mov_b64 s[%d:%d], 0' % (64 + 2 * i, 65 + 2 * i))
    mark(p, 15)
    p('s_cmp_ge_u32 s2, 256')
    p('s_cbranch_scc1 main_end')
    G.ws_srd(p)
    p('s_load_dwordx2 s[20:21], s[0:1], 56')
    p('s_load_dwordx2 s[24:25], s[0:1], 64')
    p('s_mov_b32 s22, 1024')
    p('s_mov_b32 s23, 0x00020000')
    p('s_mov_b32 s26, 0x200000')
    p('s_mov_b32 s27, 0x00020000')
    p('v_lshrrev_b32 v1, 6, v0')
    p('v_and_b32 v%d, 63, v0' % LANE)
    p('v_readfirstlane_b32 s3, v1')
    p('v_lshlrev_b32 v%d, 4, v%d' % (L16, LANE))
    p('s_and_b32 s34, s2, 7')
    p('s_lshr_b32 s35, s2, 3')
    p('s_and_b32 s%d, s35, 15' % SM)
    p('s_lshr_b32 s36, s35, 4')
    p('s_lshl_b32 s%d, s34, 1' % SC_)
    p('s_add_u32 s%d, s%d, s36' % (SC_, SC_))
    p('s_lshl_b32 s%d, s3, 13' % SLW)
    p('s_lshl_b32 s%d, s%d, 15' % (SWQ, SM))
    p('s_add_u32 s%d, s%d, s%d' % (SWQ, SWQ, SLW))
    if G.WQKV_F:
        p('s_add_u32 s%d, s%d, 0x%x' % (SWQ, SWQ, G.WQKV_F))
    p('s_waitcnt lgkmcnt(0)')
    for pre, dma in wqkv_dma():
        for t in pre:
            p(t)
        p(dma)
    p('s_lshl_b32 s%d, s34, 2' % HEAD)
    p('s_and_b32 s36, s35, 3')
    p('s_add_u32 s%d, s%d, s36' % (HEAD, HEAD))
    p('s_lshr_b32 s%d, s35, 2' % QB)
    p('s_and_b32 s%d, s3, 1' % TH)
    p('s_lshr_b32 s%d, s3, 1' % KH)
    p('s_lshl_b32 s%d, s%d, 2' % (TOKB, SC_))
    p('s_and_b32 s36, s%d, 1' % SM)
    p('s_lshl_b32 s36, s36, 1')
    p('s_add_u32 s%d, s%d, s36' % (TOKB, TOKB))
    p('s_add_u32 s%d, s%d, s%d' % (TOKB, TOKB, TH))
    p('s_and_b32 s%d, s%d, 14' % (FEAB, SM))
    p('s_add_u32 s%d, s%d, s%d' % (FEAB, FEAB, KH))
    p('s_lshl_b32 s%d, s%d, 15' % (SRES, TOKB))
    p('s_lshl_b32 s36, s%d, 11' % FEAB)
    p('s_add_u32 s%d, s%d, s36' % (SRES, SRES))
    p('s_lshl_b32 s%d, s%d, 12' % (SST, TOKB))
    p('s_lshr_b32 s36, s%d, 1' % FEAB)
    p('s_lshl_b32 s36, s36, 9')
    p('s_add_u32 s%d, s%d, s36' % (SST, SST))
    p('s_lshl_b32 s36, s%d, 3' % KH)
    p('s_add_u32 s%d, s%d, s36' % (SST, SST))
    p('s_mov_b32 s%d, 0x%x' % (LB, G.LB0))
    p('s_mov_b32 s%d, 0x%x' % (CB, G.CTR))
    p('s_mov_b32 s%d, 0' % LAYER)
    p('s_add_u32 s36, s%d, 0x%x' % (SRES, G.LB0 + G.X_F))
    p('%s %s, v%d, s[4:7], s36 offen' % (LD, v(RES, 4), L16))
    p('%s %s, v%d, s[4:7], s36 offen offset:1024' % (LD, v(RES + 4, 4), L16))
    p('v_add_u32 v%d, 0x10000, v%d' % (L16B, L16))
    p('v_lshrrev_b32 v16, 5, v%d' % LANE)
    p('v_and_b32 v17, 31, v%d' % LANE)
    p('v_lshlrev_b32 v%d, 4, v17' % VT16)
    p('v_lshl_add_u32 v%d, v16, 11, v%d' % (VST, VT16))
    p('v_and_b32 v18, 15, v%d' % LANE)
    p('v_lshlrev_b32 v18, 4, v18')
    p('v_lshl_add_u32 v18, v16, 8, v18')
    p('v_bfe_u32 v19, v%d, 4, 1' % LANE)
    p('v_lshl_add_u32 v%d, v19, 17, v18' % VVS)
    p('s_waitcnt vmcnt(0)')
    p('s_barrier')

    p.label('layer_top')
    mark(p, 0)
    vm, lg = G.VM(p), G.LG(p)
    XF, ACC, RR, ST, TF, CS, O67 = 128, 64, 112, 16, 32, 36, 48

    def wq_read(f):
        kb, j = divmod(f, 3)
        off = j * 32768 + kb * 1024
        return 'ds_read_b128 %s, v%d offset:%d' % (a_(4 * (f & 63), 4), L16 if off < 65536 else L16B, off & 0xffff)

    p('s_lshl_b32 s36, s%d, 10' % SM)
    p('s_add_u32 s36, s36, 0x%x' % G.CSF)
    p('s_add_u32 s37, s36, 0x4000')
    p('s_add_u32 s38, s36, 0x8000')
    for j in range(3):
        vm.issue('%s %s, v%d, s[4:7], s%d offen' % (LD, v(CS + 4 * j, 4), L16, 36 + j), 'cs')
    ctr_addr(POL, G.C_M2, SC_, prev=True)
    ctr_addr(SIG, G.C_QKV, SM)
    p('s_lshl_b32 s40, s%d, 2' % SC_)
    p('s_add_u32 s40, s40, s3')
    p('s_lshl_b32 s41, s40, 12')
    p('s_add_u32 s41, s41, s%d' % LB)
    p('s_add_u32 s41, s41, 0x%x' % G.ST_X)
    p('s_lshl_b32 s42, s40, 15')
    p('s_add_u32 s42, s42, s%d' % LB)
    if G.X_F:
        p('s_add_u32 s42, s42, 0x%x' % G.X_F)
    for f in range(32):
        p(wq_read(f))
    p('v_cmp_gt_u32 vcc, 32, v%d' % LANE)
    p('v_mov_b32 v%d, 0x3f803f80' % (O67 + 3))
    for i in range(3):
        p('v_mov_b32 v%d, 0' % (O67 + i))
    p('v_cndmask_b32 v%d, 0, v%d, vcc' % (O67 + 3, O67 + 3))
    p('s_lshl_b32 s43, s%d, 17' % SM)
    p('s_lshl_b32 s44, s40, 10')
    p('s_add_u32 s43, s43, s44')
    p('s_lshl_b32 s45, s43, 1')
    p('s_add_u32 s43, s43, s%d' % LB)
    p('s_add_u32 s45, s45, s%d' % LB)
    p('s_add_u32 s44, s43, 0x%x' % (G.Q_F + 0x10000))
    p('s_add_u32 s43, s43, 0x%x' % G.Q_F)
    p('s_add_u32 s46, s45, 0x%x' % (G.KV_F + 0x20000))
    p('s_add_u32 s45, s45, 0x%x' % G.KV_F)
    wait_ctr(16, skip0=True)
    mark(p, 1)
    for i in range(4):
        vm.issue('%s %s, v%d, s[4:7], s41 offen offset:%d%s' % (LD, v(ST + 4 * i, 4), VST, 512 * i, SC), 'st')

    def xload(kb):
        o = [('%s %s, v%d, s[4:7], s42 offen offset:%d%s' % (LD, v(XF + 4 * kb, 4), L16, 1024 * (kb & 3), SC), 'x%d' % kb)]
        if (kb & 3) == 3 and kb < 31:
            o.append(('s_add_u32 s42, s42, 4096', None))
        return o

    NUP = OPT.get('qup', 16)
    for kb in range(NUP):
        for t, tag in xload(kb):
            vm.issue(t, tag) if tag else p(t)
        for f in range(32 + 2 * kb, 34 + 2 * kb):
            if f < 64:
                p(wq_read(f))
    assert NUP >= 16
    TAIL = 4
    order = [(kb, j) for kb in range(32 - TAIL) for j in range(3)]
    order += [(kb, j) for j in range(3) for kb in range(32 - TAIL, 32)]
    side = {}

    def put(i, *t):
        side.setdefault(i, []).extend(t)

    i = 1
    for kb in range(NUP, 32):
        put(i, *xload(kb))
        i += 2
    for f in range(64, 96):
        put(f - 64, (wq_read(f), None))
    sm = stats_math(ST, TF, False)
    sm.append('v_mul_f32 v%d, %s, v%d' % (ST + 3, f2u(0.25 * 1.4426950408889634), ST + 2))
    for k, t in enumerate(sm):
        put(2 + k // 2, (t, None))
    CORR = 36
    ep = {}
    for j in range(3):
        e = []
        for q in range(8):
            r = ACC + 16 * j + 2 * q
            if j == 0:
                e.append('v_pk_mul_f32 %s, %s, %s op_sel:[0,1] op_sel_hi:[1,1]' % (v(r, 2), v(r, 2), v(ST + 2, 2)))
            elif j == 1:
                e.append('v_pk_mul_f32 %s, %s, %s op_sel_hi:[1,0]' % (v(r, 2), v(r, 2), v(ST + 2, 2)))
            else:
                e.append('v_pk_mul_f32 %s, %s, %s' % (v(r, 2), v(r, 2), v(RR + 2 * q, 2)))
        o = XF + 8 * j
        for q in range(8):
            r = ACC + 16 * j + 2 * q
            e.append('v_cvt_pk_bf16_f32 v%d, v%d, v%d' % (o + q, r, r + 1))
            if q in (3, 7):
                hh = q >> 2
                if j < 2:
                    e.append('%s %s, v%d, s[4:7], s%d offen%s' % (STO, v(o + 4 * hh, 4), L16, 43 + 2 * j + hh, SC))
                else:
                    e.append('%s %s, v%d, s[4:7], s45 offen offset:%d%s' % (STO, v(o + 4 * hh, 4), VVS, 1024 + 512 * hh, SC))
        ep[j] = e
    n0 = 3 * (32 - TAIL)
    for j in range(2):
        for k, t in enumerate(ep[j]):
            put(n0 + TAIL * (j + 1) + 1 + min(k // 6, TAIL - 2), (t, None))
    p('s_waitcnt lgkmcnt(0)')
    vm.wait('st')
    for i, (kb, j) in enumerate(order):
        f = 3 * kb + j
        vm.wait('x%d' % kb)
        if i == 64:
            p('s_waitcnt lgkmcnt(0)')
        w, x, acc = a_(4 * (f & 63), 4), v(XF + 4 * kb, 4), v(ACC + 16 * j, 16)
        c = '0' if kb == 0 else acc
        p(mf(acc, x, w, c) if j == 2 else mf(acc, w, x, c))
        for t, tag in side.get(i, []):
            vm.issue(t, tag) if tag else p(t)
        if i == CORR:
            p(mf(v(RR, 16), v(TF, 4), v(O67, 4), '0'))
            for jj in (1, 2, 0):
                acc = v(ACC + 16 * jj, 16)
                cs = v(CS + 4 * jj, 4)
                p(mf(acc, v(TF, 4), cs, acc) if jj == 2 else mf(acc, cs, v(TF, 4), acc))
    for t in ep[2]:
        p(t)
    mark(p, 2)
    signal()
    mark(p, 3)

    vm, lg = G.VM(p), G.LG(p)
    QF, KB_, V1, V2, P0, P1 = 16, 24, 32, 40, 48, 52
    KA, VA = 56, 58
    SB, OA, CN, T = 72, 104, 136, 152
    HALF = 16 * PAIR
    ctr_addr(POL, G.C_QKV, HEAD, shift=1)
    ctr_addr(SIG, G.C_ATT, QB)
    p('v_and_b32 v%d, 31, v%d' % (T, LANE))
    p('v_mul_u32_u24 v%d, %d, v%d' % (T, PAIR, T))
    for i in range(4):
        p('v_mov_b32 v%d, 0x3f803f80' % (T + 4 + i))
    p('ds_write_b128 v%d, %s offset:%d' % (T, v(T + 4, 4), KVB + 4096))
    p('v_add_u32 v%d, %d, v%d' % (KA, KVB, L16))
    p('v_add_u32 v%d, %d, v%d' % (KA + 1, KVB + HALF, L16))
    p('v_and_b32 v%d, 0xffff, v%d' % (T + 1, VVS))
    p('v_cmp_gt_u32 vcc, 0x10000, v%d' % VVS)
    p('v_mov_b32 v%d, %d' % (T + 2, KVB + 4096))
    for q in range(4):
        p('v_add_u32 v%d, %d, v%d' % (T + 3, KVB + 1024 + (q >> 1) * 2048 + (q & 1) * 512, T + 1))
        p('v_cndmask_b32 v%d, v%d, v%d, vcc' % (VA + q, T + 2, T + 3))
        p('v_add_u32 v%d, %d, v%d' % (VA + 4 + q, HALF, VA + q))
    for i in range(32):
        p('v_mov_b32 v%d, 0' % (OA + i))
    for i in range(4):
        p('v_mov_b32 v%d, 0' % (P1 + i))
        p('v_mov_b32 v%d, 0' % (V2 + 4 + i))
    p('s_lshl_b32 s40, s%d, 3' % QB)
    p('s_lshl_b32 s41, s3, 1')
    p('s_add_u32 s40, s40, s41')
    p('s_lshl_b32 s41, s%d, 16' % HEAD)
    p('s_lshl_b32 s42, s40, 10')
    p('s_add_u32 s42, s42, s41')
    p('s_add_u32 s42, s42, s%d' % LB)
    p('s_add_u32 s42, s42, 0x%x' % G.Q_F)
    p('s_lshl_b32 s43, s41, 1')
    p('s_add_u32 s43, s43, s%d' % LB)
    p('s_add_u32 s43, s43, 0x%x' % G.KV_F)
    p('s_lshl_b32 s44, s3, 12')
    p('s_add_u32 s44, s44, s43')
    p('s_mul_i32 s45, s3, %d' % PAIR)
    p('s_add_u32 s45, s45, %d' % KVB)
    p('s_lshl_b32 s46, s40, 15')
    p('s_lshl_b32 s47, s%d, 10' % HEAD)
    p('s_add_u32 s46, s46, s47')
    p('s_add_u32 s46, s46, s%d' % LB)
    p('s_add_u32 s46, s46, 0x%x' % G.O_F)
    p('s_add_u32 s47, s46, 0x8000')
    p('s_mul_i32 s48, s%d, %d' % (FEAB, 112 * 1024))
    p('s_xor_b32 s49, s%d, 1' % FEAB)
    p('s_mul_i32 s49, s49, %d' % (112 * 1024))
    p('s_mul_i32 s50, s3, %d' % (28 * 1024))
    p('s_add_u32 s50, s50, 0x%x' % G.W2_F)
    p('s_add_u32 s48, s48, s50')
    p('s_add_u32 s49, s49, s50')
    p('s_lshl_b32 s50, s%d, 2' % SM)
    p('s_add_u32 s50, s50, s3')
    p('s_lshl_b32 s50, s50, 15')
    p('s_add_u32 s50, s50, 0x%x' % G.W1_F)
    p('s_lshr_b32 s51, s%d, 1' % SM)
    p('s_lshl_b32 s51, s51, 16')
    p('s_lshl_b32 s52, s3, 14')
    p('s_add_u32 s51, s51, s52')
    p('s_add_u32 s51, s51, 0x%x' % G.WO_F)
    p('s_waitcnt lgkmcnt(0)')
    wait_ctr(16)
    mark(p, 4)

    def kv_dma(n):
        o = []
        for i in range(4):
            pre = []
            if i == 0:
                pre = ['s_mov_b32 m0, s45', 's_add_u32 s45, s45, %d' % (4 * PAIR)]
            post = ['s_add_u32 s44, s44, 0x4000'] if i == 3 else []
            o.append((pre, '%s v%d, s[4:7], s44 offen offset:%d%s lds' % (LD, L16, 1024 * i, SC), 'kv%d' % n, post))
        return o

    def emit4(x):
        pre, t, tag, post = x
        for y in pre:
            p(y)
        vm.issue(t, tag)
        for y in post:
            p(y)

    for x in kv_dma(0):
        emit4(x)
    for i in range(2):
        vm.issue('%s %s, v%d, s[4:7], s42 offen offset:%d%s' % (LD, v(QF + 4 * i, 4), L16, 1024 * i, SC), 'q')
    for n in range(1, 4):
        for x in kv_dma(n):
            emit4(x)
    slots = []
    for n in range(4, 8):
        slots += kv_dma(n)
    w2 = []
    for i in range(28):
        for jj in range(2):
            post = ['s_add_u32 s%d, s%d, 4096' % (48 + jj, 48 + jj)] if (i & 3) == 3 else []
            w2.append(([], '%s %s, v%d, s[4:7], s%d offen offset:%d' % (LD, a_(8 * i + 4 * jj, 4), L16, 48 + jj, 1024 * (i & 3)),
                       'w2', post))
    w1 = []
    for kb in range(32):
        d = a_(224 + 4 * kb, 4) if kb < 8 else v(160 + 4 * (kb - 8), 4)
        post = ['s_add_u32 s50, s50, 4096'] if (kb & 3) == 3 else []
        w1.append(([], '%s %s, v%d, s[4:7], s50 offen offset:%d' % (LD, d, L16, 1024 * (kb & 3)), 'w1', post))
    wo = []
    for i in range(16):
        pre = ['s_mov_b32 m0, s52', 's_add_u32 s52, s52, 4096'] if (i & 3) == 0 else []
        post = ['s_add_u32 s51, s51, 4096'] if (i & 3) == 3 else []
        wo.append((pre, '%s v%d, s[4:7], s51 offen offset:%d lds' % (LD, L16, 1024 * (i & 3)), 'wo', post))
    slots += w2[:44] + wo + w2[44:] + w1

    def kread(j):
        pr = j >> 1
        lg.issue('ds_read_b128 %s, v%d offset:%d' % (v(KB_ + 4 * (j & 1), 4), KA + (pr >> 4), (pr & 15) * PAIR + (j & 1) * 2048),
                 'k%d' % j)

    def vread(j, hf):
        pr = j >> 1
        lg.issue('ds_read_b128 %s, v%d offset:%d' % (v((V2 if hf else V1) + 4 * (j & 1), 4),
                                                    VA + 4 * (pr >> 4) + 2 * (j & 1) + hf, (pr & 15) * PAIR), 'v%d_%d' % (j, hf))

    vm.wait('q')
    p('s_barrier')
    mark(p, 5)
    kread(0)
    kread(1)
    vread(0, 0)
    vread(0, 1)
    vread(1, 0)
    lg.wait('k0')
    p(mf(v(SB, 16), v(KB_, 4), v(QF, 4), '0'))
    lg.all()
    for u in range(128):
        j, sq = u >> 1, u & 1
        cur, nxt = SB + 16 * sq, SB + 16 * (1 - sq)
        oc, op = OA + 16 * sq, OA + 16 * (1 - sq)
        jn = (u + 1) >> 1
        jp = (u - 1) >> 1

        def E(a, b):
            for i in range(a, b):
                p('v_exp_f32 v%d, v%d' % (cur + i, cur + i))

        def slot():
            if u < len(slots):
                emit4(slots[u])

        if u < 127:
            p(mf(v(nxt, 16), v(KB_ + 4 * (jn & 1), 4), v(QF + 4 * (1 - sq), 4), '0'))
        if sq == 0:
            if j + 2 < 64:
                kread(j + 2)
        else:
            slot()
        E(0, 4)
        p(mf(v(op, 16), v(V2 + 4 * (jp & 1), 4), v(P1, 4), v(op, 16)))
        if sq == 0:
            if j + 1 < 64:
                vread(j + 1, 1)
        else:
            lg.all()
            if u == 11:
                vm.wait('kv3')
                p('s_barrier')
            if u == 59:
                vm.wait('kv7')
                p('s_barrier')
        E(4, 8)
        for i in range(4):
            p('v_cvt_pk_bf16_f32 v%d, v%d, v%d' % (P0 + i, cur + 2 * i, cur + 2 * i + 1))
        E(8, 10)
        p(mf(v(oc, 16), v(V1 + 4 * (j & 1), 4), v(P0, 4), v(oc, 16)))
        if sq == 0:
            slot()
        elif j + 2 < 64:
            vread(j + 2, 0)
        E(10, 16)
        for i in range(4):
            p('v_cvt_pk_bf16_f32 v%d, v%d, v%d' % (P1 + i, cur + 8 + 2 * i, cur + 8 + 2 * i + 1))
    OB = OA + 16
    p(mf(v(OB, 16), v(V2 + 4, 4), v(P1, 4), v(OB, 16)))
    mark(p, 6)
    p('s_mov_b32 s53, %d' % (1 if OPT.get('slow') else 0))
    p.label('att_norm')
    p('v_mov_b32 v%d, 0' % (T + 2))
    p('v_mov_b32 v%d, 0' % (T + 3))
    p('v_mov_b32 v%d, %s' % (T + 4, f2u(2.0 ** 40)))
    for o, rc in ((OA, T), (OB, T + 1)):
        p('v_rcp_f32 v%d, v%d' % (rc, o + 8))
        for i in range(4):
            if rc & 1:
                p('v_pk_mul_f32 %s, %s, %s op_sel:[0,1] op_sel_hi:[1,1]' % (v(o + 2 * i, 2), v(o + 2 * i, 2), v(T, 2)))
            else:
                p('v_pk_mul_f32 %s, %s, %s op_sel_hi:[1,0]' % (v(o + 2 * i, 2), v(o + 2 * i, 2), v(T, 2)))
        for i in range(4):
            p('v_cvt_pk_bf16_f32 v%d, v%d, v%d' % (P0 + (o - OA) // 4 + i, o + 2 * i, o + 2 * i + 1))
        for i in range(4):
            p('v_pk_fma_f32 %s, %s, 0, %s op_sel_hi:[1,0,1]' % (v(T + 2, 2), v(o + 2 * i, 2), v(T + 2, 2)))
    p('v_min_f32 v%d, v%d, v%d' % (T + 5, OA + 8, OB + 8))
    p('v_add_f32 v%d, v%d, v%d' % (T + 2, T + 2, T + 3))
    p('v_add_f32 v%d, v%d, v%d' % (T + 6, OA + 8, OB + 8))
    p('v_add_f32 v%d, v%d, v%d' % (T + 6, T + 6, T + 2))
    p('v_cmp_nle_f32 vcc, %s, v%d' % (f2u(2.0 ** -60), T + 5))
    p('v_cmp_nge_f32 s[54:55], v%d, v%d' % (T + 4, T + 6))
    p('s_nop 3')
    p('s_or_b64 s[54:55], s[54:55], vcc')
    p('s_cselect_b32 s54, 1, 0')
    p('s_add_u32 s53, s53, s54')
    p('s_cmp_gt_i32 s53, 0')
    p('s_cbranch_scc1 att_slow')
    p('%s %s, v%d, s[4:7], s46 offen%s' % (STO, v(P0, 4), L16, SC))
    p('%s %s, v%d, s[4:7], s47 offen%s' % (STO, v(P1, 4), L16, SC))
    signal()
    mark(p, 7)

    vm, lg = G.VM(p), G.LG(p)
    OF, A0, A1, WR, WA = 16, 80, 96, 112, 152
    NR = 10
    ctr_addr(POL, G.C_ATT, SC_, shift=1)
    ctr_addr(SIG, G.C_WO, SC_)
    p('s_mul_i32 s40, s%d, %d' % (KH, 48 * 1024))
    p('s_xor_b32 s41, s40, 0x8000')
    p('v_add_u32 v%d, s40, v%d' % (WA, L16))
    p('v_add_u32 v%d, s41, v%d' % (WA + 1, L16))

    def wo_read(g):
        lg.issue('ds_read_b128 %s, v%d offset:%d' % (v(WR + 4 * (g % NR), 4), WA + 1 - (g & 1), 1024 * (g >> 1)), 'w%d' % g)

    for g in range(NR):
        wo_read(g)
    p('s_lshl_b32 s40, s3, 12')
    p('s_add_u32 s40, s40, 0x%x' % XCH)
    p('s_xor_b32 s41, s40, 0x2000')
    p('v_add_u32 v%d, s40, v%d' % (WA + 2, L16))
    p('v_add_u32 v%d, s41, v%d' % (WA + 3, L16))
    for t in unpack(A0, RES, 8):
        p(t)
    p('s_lshl_b32 s42, s%d, 15' % TOKB)
    p('s_lshl_b32 s43, s%d, 14' % KH)
    p('s_add_u32 s42, s42, s43')
    p('s_add_u32 s42, s42, s%d' % LB)
    p('s_add_u32 s42, s42, 0x%x' % G.O_F)
    p('s_add_u32 s43, s%d, s%d' % (SRES, LB))
    p('s_add_u32 s43, s43, 0x%x' % G.X1_F)
    p('s_add_u32 s44, s%d, s%d' % (SST, LB))
    p('s_add_u32 s44, s44, 0x%x' % G.ST_X1)
    wait_ctr(32)
    mark(p, 8)
    for i in range(16):
        vm.issue('%s %s, v%d, s[4:7], s42 offen offset:%d%s' % (LD, v(OF + 4 * i, 4), L16, 1024 * (i & 3), SC), 'o%d' % i)
        if (i & 3) == 3 and i < 15:
            p('s_add_u32 s42, s42, 4096')
    for g in range(32):
        i, jj = g >> 1, 1 - (g & 1)
        vm.wait('o%d' % i)
        lg.wait('w%d' % g)
        acc = v(A1 if jj else A0, 16)
        p(mf(acc, v(WR + 4 * (g % NR), 4), v(OF + 4 * i, 4), '0' if g == 0 else acc))
        if g + NR < 32:
            wo_read(g + NR)
    for q in range(4):
        p('ds_write_b128 v%d, %s offset:%d' % (WA + 3, v(A1 + 4 * q, 4), 1024 * q))
    p('s_waitcnt lgkmcnt(0)')
    p('s_barrier')
    for q in range(4):
        p('ds_read_b128 %s, v%d offset:%d' % (v(OF + 4 * q, 4), WA + 2, 1024 * q))
    for q in range(4):
        p('s_waitcnt lgkmcnt(%d)' % (3 - q))
        for i in range(2):
            r = 4 * q + 2 * i
            p('v_pk_add_f32 %s, %s, %s' % (v(A0 + r, 2), v(A0 + r, 2), v(OF + r, 2)))
    tile_out(A0, 43, 44, 32)
    signal()
    mark(p, 9)

    p('s_cmp_ge_u32 s%d, 14' % SM)
    p('s_cbranch_scc1 mlp2_top')
    vm, lg = G.VM(p), G.LG(p)
    AC, XR, GT, OP, ST, TC, CS, SA = 16, 48, 80, 96, 104, 120, 152, 156
    NX = 8
    ctr_addr(POL, G.C_WO, SC_)
    ctr_addr(SIG, G.C_M1, SC_)
    p('s_lshl_b32 s40, s%d, 2' % SM)
    p('s_add_u32 s40, s40, s3')
    p('s_lshl_b32 s41, s40, 10')
    p('s_add_u32 s41, s41, 0x%x' % (G.CSF + 48 * 1024))
    vm.issue('%s %s, v%d, s[4:7], s41 offen' % (LD, v(CS, 4), L16), 'cs')
    p('s_lshl_b32 s41, s%d, 2' % SC_)
    p('s_add_u32 s42, s41, s3')
    p('s_lshl_b32 s42, s42, 12')
    p('s_add_u32 s42, s42, s%d' % LB)
    p('s_add_u32 s42, s42, 0x%x' % G.ST_X1)
    p('s_lshl_b32 s43, s%d, 17' % SC_)
    p('s_add_u32 s43, s43, s%d' % SLW)
    p('s_add_u32 s43, s43, s%d' % LB)
    p('s_add_u32 s43, s43, 0x%x' % G.X1_F)
    p('s_mul_i32 s44, s41, %d' % (112 * 1024))
    p('s_lshl_b32 s45, s40, 11')
    p('s_add_u32 s44, s44, s45')
    p('s_add_u32 s44, s44, s%d' % LB)
    p('s_add_u32 s44, s44, 0x%x' % G.H_F)
    p('s_lshl_b32 s45, s3, 11')
    p('s_add_u32 s45, s45, 0x%x' % XCH)
    p('v_add_u32 v%d, s45, v%d' % (SA, L16))
    p('v_add_u32 v%d, 0x%x, v%d' % (SA + 1, XCH, L16))
    wait_ctr(16)
    mark(p, 10)
    for i in range(4):
        vm.issue('%s %s, v%d, s[4:7], s42 offen offset:%d%s' % (LD, v(ST + 4 * i, 4), VST, 512 * i, SC), 'st')

    def x1_dma(tt):
        o = []
        for i in range(8):
            pre = []
            if (i & 3) == 0:
                off = tt * 32768 + (i >> 2) * 4096
                pre = ['s_add_u32 m0, s%d, 0x%x' % (SLW, off), 's_add_u32 s46, s43, 0x%x' % off]
            o.append((pre, '%s v%d, s[4:7], s46 offen offset:%d%s lds' % (LD, L16, 1024 * (i & 3), SC), 't%d' % tt, []))
        return o

    def emit4(x):
        pre, t, tag, post = x
        for y in pre:
            p(y)
        vm.issue(t, tag)
        for y in post:
            p(y)

    for tt in range(2):
        for x in x1_dma(tt):
            emit4(x)
    k0c = -2.0 * 0.7978845608028654 * 1.4426950408889634
    k1c = k0c * 0.044715
    sm = stats_math(ST, ST + 8, True)
    sm += ['v_mul_f32 v%d, v%d, v%d' % (ST + 4, ST + 2, ST + 2),
           'v_mul_f32 v%d, %s, v%d' % (ST + 12, f2u(k0c), ST + 2),
           'v_mul_f32 v%d, v%d, v%d' % (ST + 4, ST + 4, ST + 2),
           'v_mov_b32 v%d, v%d' % (ST + 14, ST + 3),
           'v_mul_f32 v%d, %s, v%d' % (ST + 13, f2u(k1c), ST + 4),
           'v_mov_b32 v%d, v%d' % (ST + 15, ST + 3)]
    vm.wait('st')
    for t in sm:
        p(t)
    lg.issue('ds_write_b128 v%d, %s' % (SA, v(ST + 8, 4)), 'sw')
    lg.issue('ds_write_b128 v%d, %s offset:1024' % (SA, v(ST + 12, 4)), 'sw')

    def x_read(n):
        off = n * 1024
        lg.issue('ds_read_b128 %s, v%d offset:%d' % (v(XR + 4 * (n % NX), 4), L16 if off < 65536 else L16B, off & 0xffff), 'x%d' % n)

    def gelu(tt):
        a0, c = AC + 16 * (tt & 1), TC + 8 * tt + 4
        o = []
        for g in range(2):
            r0, t0 = a0 + 8 * g, GT + 8 * g
            for i in range(4):
                o.append('v_pk_mul_f32 %s, %s, %s' % (v(t0 + 2 * i, 2), v(r0 + 2 * i, 2), v(r0 + 2 * i, 2)))
            for i in range(4):
                o.append('v_pk_fma_f32 %s, %s, %s, %s op_sel:[0,1,0] op_sel_hi:[1,1,0]' % (v(t0 + 2 * i, 2), v(t0 + 2 * i, 2), v(c, 2), v(c, 2)))
            for i in range(4):
                o.append('v_pk_mul_f32 %s, %s, %s' % (v(t0 + 2 * i, 2), v(t0 + 2 * i, 2), v(r0 + 2 * i, 2)))
            for i in range(8):
                o.append('v_exp_f32 v%d, v%d' % (t0 + i, t0 + i))
            for i in range(4):
                o.append('v_pk_fma_f32 %s, %s, %s, %s' % (v(t0 + 2 * i, 2), v(t0 + 2 * i, 2), v(c + 2, 2), v(c + 2, 2)))
            for i in range(8):
                o.append('v_rcp_f32 v%d, v%d' % (t0 + i, t0 + i))
            for i in range(4):
                o.append('v_pk_mul_f32 %s, %s, %s' % (v(t0 + 2 * i, 2), v(t0 + 2 * i, 2), v(r0 + 2 * i, 2)))
            for i in range(4):
                o.append('v_cvt_pk_bf16_f32 v%d, v%d, v%d' % (OP + 4 * g + i, t0 + 2 * i, t0 + 2 * i + 1))
            o.append(('%s %s, v%d, s[4:7], s44 offen offset:%d%s' % (STO, v(OP + 4 * g, 4), L16, 1024 * g, SC), 'h'))
        o.append('s_add_u32 s44, s44, %d' % (112 * 1024))
        return o

    def emit(t):
        if isinstance(t, tuple):
            if len(t) == 4:
                emit4(t)
            else:
                vm.issue(*t)
        else:
            p(t)

    lg.all()
    vm.wait('t0')
    p('s_barrier')
    for tt in range(4):
        lg.issue('ds_read_b128 %s, v%d offset:%d' % (v(TC + 8 * tt, 4), SA + 1, 2048 * tt), 'tc')
        lg.issue('ds_read_b128 %s, v%d offset:%d' % (v(TC + 8 * tt + 4, 4), SA + 1, 2048 * tt + 1024), 'tc')
        if tt == 0:
            for n in range(NX - 1):
                x_read(n)
    for tt in range(4):
        acc = v(AC + 16 * (tt & 1), 16)
        side = {}
        if tt == 0:
            for k, x in enumerate(x1_dma(2) + x1_dma(3)):
                side.setdefault(2 * k + 1, []).append(x)
        else:
            ge = gelu(tt - 1)
            cost = [8 if isinstance(t, str) and t.startswith(('v_exp', 'v_rcp')) else 4 for t in ge]
            tot, acc_c = sum(cost), 0
            for t, cst in zip(ge, cost):
                side.setdefault(2 + acc_c * 29 // tot, []).append(t)
                acc_c += cst
        lg.wait('tc') if tt == 0 else None
        p(mf(acc, v(CS, 4), v(TC + 8 * tt, 4), '0'))
        for kb in range(32):
            n = 32 * tt + kb
            lg.wait('x%d' % n)
            w = a_(224 + 4 * kb, 4) if kb < 8 else v(160 + 4 * (kb - 8), 4)
            p(mf(acc, w, v(XR + 4 * (n % NX), 4), acc))
            nn = n + NX - 1
            if nn < 128:
                if nn % 32 == 0:
                    vm.wait('t%d' % (nn // 32))
                    p('s_barrier')
                x_read(nn)
            for t in side.get(kb, []):
                emit(t)
    for t in gelu(3):
        emit(t)
    signal()
    mark(p, 11)

    p.label('mlp2_top')
    vm, lg = G.VM(p), G.LG(p)
    AC, HR, RA = 16, 84, 80
    NH = 21
    ctr_addr(POL, G.C_M1, SC_)
    ctr_addr(SIG, G.C_M2, SC_)
    p('v_lshrrev_b32 v%d, 5, v%d' % (RA, LANE))
    p('v_lshlrev_b32 v%d, 3, v%d' % (RA, RA))
    p('s_lshl_b32 s40, s%d, 6' % FEAB)
    for j in range(4):
        vm.issue('buffer_load_dwordx2 %s, v%d, s[20:23], s40 offen offset:%d' % (v(HR + 2 * j, 2), RA, 16 * j), 'b2')
    for t in unpack(AC, RES, 8):
        p(t)
    p('s_mul_i32 s41, s3, %d' % (28 * 1024))
    p('s_add_u32 s41, s41, s%d' % LB)
    p('s_add_u32 s41, s41, 0x%x' % G.H_F)
    p('s_mul_i32 s42, s%d, %d' % (TOKB, 112 * 1024))
    p('s_xor_b32 s43, s%d, 1' % TOKB)
    p('s_mul_i32 s43, s43, %d' % (112 * 1024))
    p('s_add_u32 s42, s42, s41')
    p('s_add_u32 s43, s43, s41')
    p('s_add_u32 s44, s%d, s%d' % (SRES, LB))
    p('s_add_u32 s44, s44, 0x%x' % (G.LSTR + G.X_F))
    p('s_add_u32 s45, s%d, s%d' % (SST, LB))
    p('s_add_u32 s45, s45, 0x%x' % (G.LSTR + G.ST_X))
    vm.wait('b2')
    for t in unpack(HR + 8, HR, 8):
        p(t)
    for i in range(8):
        p('v_pk_add_f32 %s, %s, %s' % (v(AC + 2 * i, 2), v(AC + 2 * i, 2), v(HR + 8 + 2 * i, 2)))
    for sidx in (1, 2, 3):
        p('s_xor_b32 s40, s3, %d' % sidx)
        p('s_mul_i32 s40, s40, 12288')
        p('s_add_u32 s40, s40, %d' % (RED + (sidx - 1) * 4096))
        p('v_add_u32 v%d, s40, v%d' % (RA + sidx, L16))
    p('s_mul_i32 s40, s3, 12288')
    p('s_add_u32 s40, s40, %d' % RED)
    p('v_add_u32 v%d, s40, v%d' % (RA, L16))
    wait_ctr(14)
    mark(p, 12)

    def hload(n):
        kb, aa = n >> 1, 1 - (n & 1)
        post = ['s_add_u32 s%d, s%d, 4096' % (42 + aa, 42 + aa)] if (kb & 3) == 3 else []
        return ([], '%s %s, v%d, s[4:7], s%d offen offset:%d%s' % (LD, v(HR + 8 * (kb % NH) + 4 * aa, 4), L16, 42 + aa,
                                                                  1024 * (kb & 3), SC), 'h%d' % n, post)

    HUP = OPT.get('hup', 20)
    for n in range(HUP):
        emit4(hload(n))
    side = {}
    i = 0
    for n in range(HUP, 56):
        kb = n >> 1
        i = max(i, 4 * (kb - NH) + 3)
        side.setdefault(i, []).append(hload(n))
        i += 2
    dm = wqkv_dma()
    for k, (pre, t) in enumerate(dm):
        side.setdefault(i + k * (111 - i) // 24, []).append((pre, t, 'wq', []))
    for kb in range(28):
        sl = HR + 8 * (kb % NH)
        for k, sidx in enumerate((1, 3, 2, 0)):
            aa, bb = sidx & 1, sidx >> 1
            vm.wait('h%d' % (2 * kb + 1 - aa))
            acc = v(AC + 16 * sidx, 16)
            p(mf(acc, a_(8 * kb + 4 * bb, 4), v(sl + 4 * aa, 4), '0' if (kb == 0 and sidx) else acc))
            for t in side.get(4 * kb + k, []):
                emit4(t)
    mark(p, 13)
    for sidx in (1, 3, 2):
        for q in range(4):
            p('ds_write_b128 v%d, %s offset:%d' % (RA + sidx, v(AC + 16 * sidx + 4 * q, 4), 1024 * q))
    p('s_waitcnt lgkmcnt(0)')
    p('s_barrier')
    for i in range(12):
        p('ds_read_b128 %s, v%d offset:%d' % (v(HR + 4 * i, 4), RA, 1024 * i))
    for sidx in range(3):
        p('s_waitcnt lgkmcnt(%d)' % (8 - 4 * sidx))
        for i in range(8):
            p('v_pk_add_f32 %s, %s, %s' % (v(AC + 2 * i, 2), v(AC + 2 * i, 2), v(HR + 16 * sidx + 2 * i, 2)))
    p('s_cmp_lg_u32 s%d, 0' % LAYER)
    p('s_cbranch_scc1 final_out')
    tile_out(AC, 44, 45, 32)
    signal()
    mark(p, 14)
    G.dump_ts(p, None)
    p('s_add_u32 s%d, s%d, 0x%x' % (LB, LB, G.LSTR))
    p('s_add_u32 s%d, s%d, 0x%x' % (CB, CB, G.CL))
    p('s_mov_b32 s%d, 1' % LAYER)
    p('s_branch layer_top')

    p.label('final_out')
    for i in range(8):
        p('v_cvt_pk_bf16_f32 v%d, v%d, v%d' % (RES + i, AC + 2 * i, AC + 2 * i + 1))
    p('v_lshlrev_b32 v32, 6, v%d' % VT16)
    p('v_lshrrev_b32 v33, 5, v%d' % LANE)
    p('v_lshl_add_u32 v32, v33, 4, v32')
    p('s_lshl_b32 s40, s%d, 15' % TOKB)
    p('s_lshl_b32 s41, s%d, 6' % FEAB)
    p('s_add_u32 s40, s40, s41')
    for m in range(2):
        b = RES + 4 * m
        p('v_permlane32_swap_b32 v%d, v%d' % (b, b + 2))
        p('v_permlane32_swap_b32 v%d, v%d' % (b + 1, b + 3))
    p('%s %s, v32, s[24:27], s40 offen' % (STO, v(RES, 4)))
    p('%s %s, v32, s[24:27], s40 offen offset:32' % (STO, v(RES + 4, 4)))
    if G.TS:
        p('s_waitcnt vmcnt(0)')
        mark(p, 14)
        G.dump_ts(p, 's%d' % LAYER)
    p.label('main_end')
    p('s_endpgm')

    p.label('att_slow')
    p('v_and_b32 v%d, 0xffff, v%d' % (T + 1, VVS))
    p('s_mov_b32 s56, 0x0000ffff')
    p('s_mov_b32 s57, 0x0000ffff')
    for i in range(4):
        p('v_mov_b32 v%d, 0x3f803f80' % (V1 + i))
        p('v_mov_b32 v%d, 0x3f803f80' % (V2 + i))
    for sq in range(2):
        o, q = OA + 16 * sq, v(QF + 4 * sq, 4)
        l1, l2 = lab('mx'), lab('pv')
        p('v_mov_b32 v%d, 0xff800000' % T)
        p('s_mov_b32 s54, s43')
        p('s_mov_b32 s55, 0')
        p.label(l1)
        p('%s %s, v%d, s[4:7], s54 offen%s' % (LD, v(KB_, 4), L16, SC))
        p('s_add_u32 s54, s54, 2048')
        p('s_add_u32 s55, s55, 1')
        p('s_waitcnt vmcnt(0)')
        p(mf(v(SB, 16), v(KB_, 4), q, '0'))
        p('s_cmp_lt_u32 s55, 64')
        for i in range(8):
            p('v_max3_f32 v%d, v%d, v%d, v%d' % (T, T, SB + 2 * i, SB + 2 * i + 1))
        p('s_cbranch_scc1 %s' % l1)
        p('v_mov_b32 v%d, v%d' % (T + 2, T))
        p('v_permlane32_swap_b32 v%d, v%d' % (T, T + 2))
        p('v_max_f32 v%d, v%d, v%d' % (T, T, T + 2))
        for i in range(16):
            p('v_sub_f32 v%d, 0, v%d' % (CN + i, T))
            p('v_mov_b32 v%d, 0' % (o + i))
        p('s_mov_b32 s54, s43')
        p('s_mov_b32 s55, 0')
        p.label(l2)
        p('%s %s, v%d, s[4:7], s54 offen%s' % (LD, v(KB_, 4), L16, SC))
        p('s_mov_b64 exec, s[56:57]')
        p('%s %s, v%d, s[4:7], s54 offen offset:1024%s' % (LD, v(V1, 4), T + 1, SC))
        p('%s %s, v%d, s[4:7], s54 offen offset:1536%s' % (LD, v(V2, 4), T + 1, SC))
        p('s_mov_b64 exec, -1')
        p('s_add_u32 s54, s54, 2048')
        p('s_add_u32 s55, s55, 1')
        p('s_waitcnt vmcnt(0)')
        p(mf(v(SB, 16), v(KB_, 4), q, v(CN, 16)))
        p('s_cmp_lt_u32 s55, 64')
        for i in range(16):
            p('v_exp_f32 v%d, v%d' % (SB + i, SB + i))
        for i in range(8):
            p('v_cvt_pk_bf16_f32 v%d, v%d, v%d' % (P0 + i, SB + 2 * i, SB + 2 * i + 1))
        p(mf(v(o, 16), v(V1, 4), v(P0, 4), v(o, 16)))
        p(mf(v(o, 16), v(V2, 4), v(P1, 4), v(o, 16)))
        p('s_cbranch_scc1 %s' % l2)
    p('s_mov_b32 s53, -2')
    p('s_branch att_norm')
    return dict(name=name, grid=256, block=256, lds=163840, vgpr=256, agpr=256)
```

```python
import os
import struct
import sys

sys.path.insert(0, os.path.dirname(os.path.abspath(__file__)))
from asmlib import Prog, v, a_, s

MAIN = 'interleave_layers__mha_block__mixer_channel_mlp__prompt'

WQKV_F = 0x000000
WO_F = 0x180000
W1_F = 0x200000
W2_F = 0x400000
CSF = 0x5C0000
CTR = 0x5F0000
LB0 = 0x600000
LSTR = 0x1400000
X_F = 0x000000
X1_F = 0x200000
Q_F = 0x400000
KV_F = 0x600000
O_F = 0xA00000
H_F = 0xC00000
ST_X = 0x1300000
ST_X1 = 0x1340000
WS_BYTES = 0x10000000
CI, CK, CL = 256, 4096, 0x5000
C_QKV, C_ATT, C_WO, C_M1, C_M2 = range(5)

MFMA = 'v_mfma_f32_32x32x16_bf16'
SC = ' sc1'
TS = False
OPT = {}


def f2u(x):
    return '0x%08x' % struct.unpack('<I', struct.pack('<f', x))[0]


class Cnt:
    def __init__(self, p, name, mx):
        self.p, self.name, self.mx = p, name, mx
        self.tags = []
        self.done = 0

    def note(self, tag):
        self.tags.append(tag)

    def issue(self, text, tag):
        self.p(text)
        self.tags.append(tag)

    def wtext(self, *tags):
        idx = [i for i, t in enumerate(self.tags) if t in tags]
        assert idx, tags
        last = max(idx)
        if last < self.done:
            return None
        n = len(self.tags) - 1 - last
        n = min(n, self.mx)
        self.done = len(self.tags) - n
        return 's_waitcnt %s(%d)' % (self.name, n)

    def wait(self, *tags):
        t = self.wtext(*tags)
        if t:
            self.p(t)

    def all(self):
        self.p('s_waitcnt %s(0)' % self.name)
        self.done = len(self.tags)


def VM(p):
    return Cnt(p, 'vmcnt', 63)


def LG(p):
    return Cnt(p, 'lgkmcnt', 15)


def kernel_head(p, name):
    p('.p2align 8')
    p('.type %s,@function' % name)
    p.label(name)


def ws_srd(p):
    p('s_load_dwordx2 s[4:5], s[0:1], 80')
    p('s_mov_b32 s6, 0x%x' % WS_BYTES)
    p('s_mov_b32 s7, 0x00020000')


NST = 16


def mark(p, i):
    if TS:
        p('s_memrealtime s[%d:%d]' % (64 + 2 * i, 65 + 2 * i))


def dump_ts(p, slot_sgpr):
    if not TS:
        return
    p('s_load_dwordx2 s[100:101], s[0:1], 72')
    p('s_lshl_b32 s96, s2, 2')
    p('s_add_u32 s96, s96, s3')
    p('s_lshl_b32 s96, s96, 1')
    if slot_sgpr is not None:
        p('s_add_u32 s96, s96, %s' % slot_sgpr)
    p('s_lshl_b32 s96, s96, 6')
    p('s_mov_b64 exec, 1')
    p('v_mov_b32 v96, s96')
    p('s_waitcnt lgkmcnt(0)')
    for i in range(NST):
        p('v_mov_b32 v%d, s%d' % (80 + i, 64 + 2 * i))
    for q in range(4):
        p('global_store_dwordx4 v96, %s, s[100:101] offset:%d' % (v(80 + 4 * q, 4), 16 * q))
    p('s_waitcnt vmcnt(0)')
    p('s_mov_b64 exec, -1')


def gen_prep(p, name):
    NC, NX, NW = 56, 256, 352
    kernel_head(p, name)
    if TS:
        for i in range(NST):
            p('s_mov_b64 s[%d:%d], 0' % (64 + 2 * i, 65 + 2 * i))
    mark(p, 0)
    p('s_cmp_ge_u32 s2, %d' % (NC + NX + NW))
    p('s_cbranch_scc1 prep_end')
    ws_srd(p)
    p('v_lshrrev_b32 v1, 6, v0')
    p('v_and_b32 v2, 63, v0')
    p('v_readfirstlane_b32 s3, v1')
    p('v_lshlrev_b32 v3, 4, v2')
    p('s_cmp_lt_u32 s2, %d' % NC)
    p('s_cbranch_scc1 prep_c')
    p('s_sub_u32 s40, s2, %d' % NC)
    p('s_lshr_b32 s20, s40, 3')
    p('s_lshl_b32 s20, s20, 2')
    p('s_add_u32 s20, s20, s3')
    p('s_cmp_ge_u32 s20, (code_end-code_begin)>>10')
    p('s_cbranch_scc1 prep_nopf')
    p('s_getpc_b64 s[22:23]')
    p.label('prep_pc')
    p('s_lshl_b32 s20, s20, 10')
    p('s_add_u32 s20, s20, code_begin-prep_pc')
    p('s_add_u32 s22, s22, s20')
    p('s_addc_u32 s23, s23, 0')
    p('global_load_dwordx4 v[40:43], v3, s[22:23]')
    p.label('prep_nopf')
    p('s_cmp_ge_u32 s40, %d' % NX)
    p('s_cbranch_scc1 prep_w')
    p('s_load_dwordx2 s[8:9], s[0:1], 0')
    p('s_mov_b32 s10, 0x200000')
    p('s_mov_b32 s11, 0x00020000')
    p('s_lshl_b32 s12, s40, 3')
    p('s_lshl_b32 s13, s3, 1')
    p('s_add_u32 s12, s12, s13')
    p('s_lshl_b32 s13, s12, 10')
    p('s_waitcnt lgkmcnt(0)')
    p('buffer_load_dwordx4 v[4:7], v3, s[8:11], s13 offen')
    p('buffer_load_dwordx4 v[8:11], v3, s[8:11], s13 offen offset:1024')
    p('v_lshrrev_b32 v12, 1, v2')
    p('v_lshlrev_b32 v12, 10, v12')
    p('v_and_b32 v13, 1, v2')
    p('v_lshl_add_u32 v12, v13, 9, v12')
    p('v_cmp_eq_u32 vcc, 1, v13')
    p('s_lshr_b32 s14, s12, 5')
    p('s_and_b32 s15, s12, 31')
    p('s_lshl_b32 s16, s14, 15')
    p('s_lshl_b32 s17, s15, 4')
    p('s_add_u32 s16, s16, s17')
    p('s_add_u32 s16, s16, 0x%x' % (LB0 + X_F))
    p('s_lshl_b32 s18, s14, 12')
    p('s_add_u32 s18, s18, s17')
    p('s_add_u32 s18, s18, 0x%x' % (LB0 + ST_X))
    p('v_sub_u32 v14, 63, v2')
    p('v_lshlrev_b32 v14, 9, v14')
    p('s_mov_b32 s19, 0x3f803f80')
    for r in (16, 17, 18, 19, 20, 21, 22, 23):
        p('v_mov_b32 v%d, 0' % r)
    p('s_waitcnt vmcnt(0)')
    mark(p, 1)
    for row in range(2):
        d = 4 + 4 * row
        st = 16 + 4 * row
        for i in range(4):
            p('v_dot2_f32_bf16 v%d, v%d, s19, v%d' % (st, d + i, st))
            p('v_dot2_f32_bf16 v%d, v%d, v%d, v%d' % (st + 1, d + i, d + i, st + 1))
    for row in range(2):
        d = 4 + 4 * row
        o = 24 + 8 * row
        p('v_cndmask_b32 v%d, v%d, v%d, vcc' % (o + 4, d + 2, d + 0))
        p('v_cndmask_b32 v%d, v%d, v%d, vcc' % (o + 5, d + 3, d + 1))
        p('v_mov_b32_dpp v%d, v%d quad_perm:[1,0,3,2] row_mask:0xf bank_mask:0xf' % (o + 6, o + 4))
        p('v_mov_b32_dpp v%d, v%d quad_perm:[1,0,3,2] row_mask:0xf bank_mask:0xf' % (o + 7, o + 5))
        p('v_cndmask_b32 v%d, v%d, v%d, vcc' % (o + 0, d + 0, o + 6))
        p('v_cndmask_b32 v%d, v%d, v%d, vcc' % (o + 1, d + 1, o + 7))
        p('v_cndmask_b32 v%d, v%d, v%d, vcc' % (o + 2, o + 6, d + 2))
        p('v_cndmask_b32 v%d, v%d, v%d, vcc' % (o + 3, o + 7, d + 3))
        p('buffer_store_dwordx4 %s, v12, s[4:7], s16 offen offset:%d' % (v(o, 4), 16 * row))
    for ctl in ('row_shr:1 row_mask:0xf bank_mask:0xf bound_ctrl:0',
                'row_shr:2 row_mask:0xf bank_mask:0xf bound_ctrl:0',
                'row_shr:4 row_mask:0xf bank_mask:0xf bound_ctrl:0',
                'row_shr:8 row_mask:0xf bank_mask:0xf bound_ctrl:0',
                'row_bcast:15 row_mask:0xa bank_mask:0xf',
                'row_bcast:31 row_mask:0xc bank_mask:0xf'):
        for r in (16, 17, 20, 21):
            p('v_add_f32_dpp v%d, v%d, v%d %s' % (r, r, r, ctl))
    p('s_mov_b32 exec_lo, 0')
    p('s_mov_b32 exec_hi, 0x7f000000')
    for r in (16, 17, 20, 21):
        p('v_mov_b32 v%d, 0' % r)
    p('s_mov_b32 exec_hi, 0xff000000')
    p('buffer_store_dwordx4 v[16:19], v14, s[4:7], s18 offen')
    p('buffer_store_dwordx4 v[20:23], v14, s[4:7], s18 offen offset:16')
    p('s_branch prep_fin')
    p.label('prep_w')
    p('s_sub_u32 s12, s40, %d' % NX)
    p('s_lshr_b32 s24, s3, 1')
    p('s_and_b32 s25, s3, 1')
    p('s_cmp_ge_u32 s12, 240')
    p('s_cbranch_scc1 prep_w2')
    p('s_lshr_b32 s13, s12, 4')
    p('s_and_b32 s14, s12, 15')
    p('s_mov_b32 s18, 32')
    p('s_cmp_ge_u32 s13, 8')
    p('s_cbranch_scc1 prep_w1')
    p('s_cmp_ge_u32 s13, 6')
    p('s_cbranch_scc1 prep_wo')
    p('s_load_dwordx2 s[8:9], s[0:1], 8')
    p('s_mov_b32 s10, %d' % (512 * 1536 * 2))
    p('s_mov_b32 s16, 3072')
    p('s_mov_b32 s17, 0x%x' % WQKV_F)
    p('s_branch prep_wgo')
    p.label('prep_wo')
    p('s_load_dwordx2 s[8:9], s[0:1], 16')
    p('s_mov_b32 s10, %d' % (512 * 512 * 2))
    p('s_mov_b32 s16, 1024')
    p('s_mov_b32 s17, 0x%x' % WO_F)
    p('s_sub_u32 s13, s13, 6')
    p('s_branch prep_wgo')
    p.label('prep_w1')
    p('s_load_dwordx2 s[8:9], s[0:1], 32')
    p('s_mov_b32 s10, %d' % (512 * 1792 * 2))
    p('s_mov_b32 s16, 3584')
    p('s_mov_b32 s17, 0x%x' % W1_F)
    p('s_sub_u32 s13, s13, 8')
    p('s_branch prep_wgo')
    p.label('prep_w2')
    p('s_load_dwordx2 s[8:9], s[0:1], 48')
    p('s_mov_b32 s10, %d' % (512 * 1792 * 2))
    p('s_mov_b32 s16, 1024')
    p('s_mov_b32 s17, 0x%x' % W2_F)
    p('s_mov_b32 s18, 112')
    p('s_sub_u32 s14, s12, 240')
    p('s_cmp_ge_u32 s14, 56')
    p('s_cselect_b32 s13, 1, 0')
    p('s_cselect_b32 s15, 56, 0')
    p('s_sub_u32 s14, s14, s15')
    p.label('prep_wgo')
    p('s_mov_b32 s11, 0x00020000')
    p('s_lshl_b32 s14, s14, 1')
    p('s_add_u32 s14, s14, s24')
    p('s_lshl_b32 s19, s14, 4')
    p('s_lshl_b32 s26, s25, 2')
    p('s_add_u32 s19, s19, s26')
    p('s_mul_i32 s19, s19, s16')
    p('s_lshl_b32 s26, s13, 9')
    p('s_add_u32 s30, s19, s26')
    p('s_add_u32 s31, s30, s16')
    p('s_add_u32 s32, s31, s16')
    p('s_add_u32 s33, s32, s16')
    p('s_lshl_b32 s26, s16, 3')
    for i in range(4):
        p('s_add_u32 s%d, s%d, s26' % (34 + i, 30 + i))
    p('v_lshlrev_b32 v4, 3, v2')
    p('s_waitcnt lgkmcnt(0)')
    for j in range(8):
        p('buffer_load_dwordx2 %s, v4, s[8:11], s%d offen' % (v(8 + 2 * j, 2), 30 + j))
    p('s_lshl_b32 s26, s18, 10')
    p('v_lshrrev_b32 v5, 3, v2')
    p('v_and_b32 v6, 7, v2')
    p('v_lshlrev_b32 v6, 6, v6')
    p('v_mad_u32_u24 v5, v5, s26, v6')
    p('s_mul_i32 s27, s13, s18')
    p('s_lshl_b32 s27, s27, 3')
    p('s_add_u32 s27, s27, s14')
    p('s_lshl_b32 s27, s27, 10')
    p('s_lshl_b32 s28, s25, 9')
    p('s_add_u32 s27, s27, s28')
    p('s_add_u32 s27, s27, s17')
    p('s_mov_b32 s28, 0x05040100')
    p('s_mov_b32 s29, 0x07060302')
    p('s_waitcnt vmcnt(0)')
    mark(p, 1)
    for i in range(4):
        for m in range(4):
            lo = 8 + 2 * (2 * m) + (i >> 1)
            hi = 8 + 2 * (2 * m + 1) + (i >> 1)
            p('v_perm_b32 v%d, v%d, v%d, s%d' % (24 + 4 * i + m, hi, lo, 28 + (i & 1)))
        p('buffer_store_dwordx4 %s, v5, s[4:7], s27 offen offset:%d' % (v(24 + 4 * i, 4), 16 * i))
    p('s_branch prep_fin')
    p.label('prep_c')
    p('s_cmp_lt_u32 s2, 52')
    p('s_cbranch_scc1 prep_cs')
    p('s_sub_u32 s12, s2, 52')
    p('s_mul_i32 s12, s12, 12288')
    p('s_add_u32 s12, s12, 0x%x' % CTR)
    p('v_lshlrev_b32 v4, 4, v0')
    for r in range(8, 12):
        p('v_mov_b32 v%d, 0' % r)
    p('s_add_u32 s13, s12, 4096')
    p('s_add_u32 s14, s12, 8192')
    p('s_waitcnt lgkmcnt(0)')
    for r in (12, 13, 14):
        p('buffer_store_dwordx4 v[8:11], v4, s[4:7], s%d offen' % r)
    p('s_branch prep_fin')
    p.label('prep_cs')
    p('s_cmp_ge_u32 s2, 24')
    p('s_cbranch_scc1 prep_cs1')
    p('s_load_dwordx2 s[8:9], s[0:1], 8')
    p('s_load_dwordx2 s[12:13], s[0:1], 40')
    p('s_mov_b32 s10, %d' % (512 * 1536 * 2))
    p('s_mov_b32 s16, 3072')
    p('s_lshl_b32 s17, s2, 7')
    p('s_mov_b32 s14, 0')
    p('s_branch prep_csgo')
    p.label('prep_cs1')
    p('s_load_dwordx2 s[8:9], s[0:1], 32')
    p('s_load_dwordx2 s[12:13], s[0:1], 40')
    p('s_mov_b32 s10, %d' % (512 * 1792 * 2))
    p('s_mov_b32 s16, 3584')
    p('s_sub_u32 s17, s2, 24')
    p('s_lshl_b32 s17, s17, 7')
    p('s_mov_b32 s14, 3584')
    p.label('prep_csgo')
    p('s_mov_b32 s11, 0x00020000')
    p('s_mov_b32 s15, 0x00020000')
    p('v_lshrrev_b32 v4, 3, v0')
    p('v_and_b32 v5, 7, v0')
    p('v_lshlrev_b32 v6, 4, v5')
    p('v_mad_u32_u24 v6, v4, s16, v6')
    p('s_lshl_b32 s18, s16, 5')
    p('s_mov_b32 s19, s17')
    p('v_lshlrev_b32 v7, 1, v2')
    p('s_waitcnt lgkmcnt(0)')
    for j in range(16):
        p('buffer_load_dwordx4 %s, v6, s[8:11], s19 offen' % v(16 + 4 * j, 4))
        if j < 15:
            p('s_add_u32 s19, s19, s18')
    p('buffer_load_ushort v80, v7, s[12:15], s17 offen')
    for r in range(8, 16):
        p('v_mov_b32 v%d, 0' % r)
    p('s_mov_b32 s20, 0x00003f80')
    p('s_mov_b32 s21, 0x3f800000')
    for j in range(16):
        p('s_waitcnt vmcnt(%d)' % (16 - j))
        for i in range(4):
            p('v_dot2_f32_bf16 v%d, v%d, s20, v%d' % (8 + 2 * i, 16 + 4 * j + i, 8 + 2 * i))
            p('v_dot2_f32_bf16 v%d, v%d, s21, v%d' % (9 + 2 * i, 16 + 4 * j + i, 9 + 2 * i))
    p('v_lshlrev_b32 v6, 5, v0')
    p('ds_write_b128 v6, v[8:11]')
    p('ds_write_b128 v6, v[12:15] offset:16')
    p('s_waitcnt lgkmcnt(0)')
    p('s_barrier')
    p('s_cmp_lg_u32 s3, 0')
    p('s_cbranch_scc1 prep_fin')
    p('v_lshlrev_b32 v6, 2, v2')
    for g in range(0, 32, 2):
        p('ds_read2st64_b32 %s, v6 offset0:%d offset1:%d' % (v(16 + g, 2), g, g + 1))
    p('s_waitcnt lgkmcnt(0)')
    for st in (16, 8, 4, 2, 1):
        for i in range(st):
            p('v_add_f32 v%d, v%d, v%d' % (16 + i, 16 + i, 16 + st + i))
    p('v_cvt_pk_bf16_f32 v9, v16, v16')
    p('v_lshlrev_b32 v10, 16, v9')
    p('v_sub_f32 v10, v16, v10')
    p('v_cvt_pk_bf16_f32 v8, v16, v10')
    p('v_and_b32 v9, 0xffff, v9')
    p('s_waitcnt vmcnt(0)')
    p('v_lshl_or_b32 v9, v80, 16, v9')
    p('v_mov_b32 v10, v80')
    for r in range(11, 16):
        p('v_mov_b32 v%d, 0' % r)
    p('v_lshrrev_b32 v4, 5, v2')
    p('v_and_b32 v5, 31, v2')
    p('v_lshlrev_b32 v5, 4, v5')
    p('v_lshl_add_u32 v5, v4, 10, v5')
    p('s_lshl_b32 s17, s2, 11')
    p('s_add_u32 s17, s17, 0x%x' % CSF)
    p('buffer_store_dwordx4 v[8:11], v5, s[4:7], s17 offen')
    p('buffer_store_dwordx4 v[12:15], v5, s[4:7], s17 offen offset:512')
    p.label('prep_fin')
    if TS:
        p('s_mov_b64 exec, -1')
        p('s_waitcnt vmcnt(0)')
        mark(p, 15)
        dump_ts(p, None)
    p.label('prep_end')
    p('s_endpgm')
    return dict(name=name, grid=NC + NX + NW, block=256, lds=8192, vgpr=100 if TS else 84, agpr=0)


from gen2_main import gen_main


def build(out_path):
    p = Prog()
    ks = {}
    ks['prep'] = gen_prep(p, MAIN + '_kernel')
    p('.p2align 8')
    p.label('code_begin')
    ks['main'] = gen_main(p, 'stack_kernel', sys.modules[__name__])
    p.label('code_end')
    p('s_endpgm')
    p.fix()
    order = ['prep', 'main']
    head = ['; generated by gen/gen2.py -- kernel list for ' + MAIN]
    for o in order:
        k = ks[o]
        head.append('; @launch kernel=%s grid=(%d,1,1) block=(%d,1,1) lds=%d' % (k['name'], k['grid'], k['block'], k['lds']))
    head += ['.amdgcn_target "amdgcn-amd-amdhsa--gfx950"', '.text']
    for k in ks.values():
        head.append('.globl %s' % k['name'])
    tail = ['.section .rodata,"a"']
    for k in ks.values():
        acc = -(-k['vgpr'] // 4) * 4
        tot = acc + k['agpr'] if k['agpr'] else k['vgpr']
        tail += ['.p2align 6',
                 '.amdhsa_kernel %s' % k['name'],
                 '  .amdhsa_next_free_vgpr %d' % tot,
                 '  .amdhsa_next_free_sgpr 102',
                 '  .amdhsa_accum_offset %d' % acc,
                 '  .amdhsa_group_segment_fixed_size 0',
                 '  .amdhsa_kernarg_size 88',
                 '  .amdhsa_user_sgpr_count 2',
                 '  .amdhsa_user_sgpr_kernarg_segment_ptr 1',
                 '  .amdhsa_system_sgpr_workgroup_id_x 1',
                 '.end_amdhsa_kernel']
    with open(out_path, 'w') as f:
        f.write('\n'.join(head) + '\n' + p.text() + '\n'.join(tail) + '\n')


if __name__ == '__main__':
    out = sys.argv[1] if len(sys.argv) > 1 else 'p.s'
    TS = os.environ.get('TS', '0') == '1'
    for kv in sys.argv[2:]:
        k, _, val = kv.partition('=')
        OPT[k] = int(val, 0) if val else 1
    build(out)
```

```python
import re
from asmlib import Ins, Prog, regs_of, v, a_, s

ADDR = re.compile(r'\{(s\d+|0)\+(0x[0-9a-f]+|\d+)\}')
M0 = re.compile(r'\{m0=(s\d+|0)\+(0x[0-9a-f]+|\d+)\}')
ANN = re.compile(r'(\w+)=([\w,.*]+)')


def cost(t):
    if isinstance(t, (list, tuple)):
        return sum(cost(x) for x in t)
    t = t.strip()
    if t.startswith('@check'):
        return 8 + 4 * (len(t.split()[4].split(',')) // 2)
    if t.startswith('@') or t.endswith(':'):
        return 0
    if t.startswith(('v_exp', 'v_rcp', 'v_rsq', 'v_dot', 'v_pk_', 'v_permlane')):
        return 8
    if t.startswith('v_mfma'):
        return 8
    if t.startswith('buffer_'):
        return 14
    if t.startswith('ds_'):
        return 6
    return 4


class Sched:
    def __init__(self):
        self.bb = []
        self.gap = []
        self.pre = []

    def add(self, t):
        self.bb.append(t)
        self.gap.append([])
        self.pre.append([])
        return len(self.bb) - 1

    def n(self):
        return len(self.bb)

    def at(self, i, *items):
        self.gap[i].extend(items)

    def before(self, i, *items):
        self.pre[i].extend(items)

    def spread(self, items, lo, hi):
        tot = sum(cost(t) for t in items) or 1
        acc = 0
        n = hi - lo + 1
        for t in items:
            self.gap[lo + min(n - 1, acc * n // tot)].append(t)
            acc += cost(t)

    def fill(self, items, lo, budget=24, hi=None):
        top = len(self.bb) - 1 if hi is None else hi
        base = [self.load(i) for i in range(lo, top + 1)]
        while True:
            ld = list(base)
            i, plan = 0, []
            for t in items:
                c = cost(t)
                while i < len(ld) and ld[i] + min(c, 12) > budget:
                    i += 1
                if i == len(ld):
                    break
                ld[i] += c
                plan.append(lo + i)
            if len(plan) == len(items):
                break
            budget += 2
        for t, i in zip(items, plan):
            self.gap[i].append(t)
        return plan[-1]

    def load(self, i):
        c = cost(self.gap[i])
        if i + 1 < len(self.pre):
            c += cost(self.pre[i + 1])
        return c

    def emit(self, p):
        def e(t):
            if isinstance(t, (list, tuple)):
                for x in t:
                    e(x)
            else:
                p(t)
        for i, t in enumerate(self.bb):
            e(self.pre[i])
            e(t)
            e(self.gap[i])

    def report(self):
        o = []
        for i, t in enumerate(self.bb):
            for x in self.pre[i] + [t]:
                if isinstance(x, str) and x.startswith('@mark'):
                    o.append('\n' + x[6:] + ':')
            o.append('%d' % self.load(i))
        return '\n'.join(l for l in ' '.join(o).split('\n') if len(l) < 400)


class Prog3:
    def __init__(self, pool, stub_s, bud, ts=False):
        self.lines = []
        self.pool = list(pool)
        self.st, self.sm = stub_s
        self.bud = bud
        self.ts = ts
        self.nstub = 0
        self.marks = {}

    def __call__(self, t):
        if isinstance(t, (list, tuple)):
            for x in t:
                self(x)
            return
        for line in t.split('\n'):
            line = line.strip()
            if line and not line.startswith(';'):
                self.lines.append(line)

    def label(self, n):
        self.lines.append(n + ':')

    @staticmethod
    def _setadd(dst, base, c):
        if base == '0':
            return 's_mov_b32 %s, 0x%x' % (dst, c)
        if c == 0:
            return 's_mov_b32 %s, %s' % (dst, base)
        return 's_add_u32 %s, %s, 0x%x' % (dst, base, c)

    def _plain(self, body):
        out = []
        m = M0.search(body)
        if m:
            out.append(self._setadd('m0', m.group(1), int(m.group(2), 0)))
            body = M0.sub('', body)
        a = ADDR.search(body)
        if a:
            out.append(self._setadd('s%d' % self.st, a.group(1), int(a.group(2), 0)))
            body = ADDR.sub('s%d' % self.st, body)
        out.append(body.strip())
        return out

    def lower(self, out):
        cache = {}
        lru = []
        m0 = None
        vm, lg = [], []
        fam = {}
        stubs = []
        manual = False
        pend_ts = None

        def waitfor(q, idx):
            return len(q) - 1 - idx

        def emit_wait(nv, nl):
            nonlocal vm, lg
            parts = []
            if nv is not None:
                nv = min(nv, 63)
                parts.append('vmcnt(%d)' % nv)
                vm = vm[len(vm) - nv:] if nv else []
            if nl is not None:
                nl = min(nl, 15)
                parts.append('lgkmcnt(%d)' % nl)
                lg = lg[len(lg) - nl:] if nl else []
            if parts:
                out('s_waitcnt ' + ' '.join(parts))

        def need(q, pred):
            idx = [i for i, e in enumerate(q) if pred(e)]
            return waitfor(q, max(idx)) if idx else None

        def emit(body, ann):
            i = Ins(body)
            if not manual:
                touch = {r for r in (i.src | i.dst) if r[0] in 'va'}
                nl = need(lg, lambda e: e[0] & touch)
                if nl is not None and nl >= 5 and i.kind == 'mfma':
                    nl -= 1
                emit_wait(need(vm, lambda e: e[0] & touch), nl)
                if i.op == 's_waitcnt':
                    raise ValueError('raw waitcnt in automatic region: ' + body)
                for r in i.dst:
                    if r[0] == 's':
                        nm = 's%s' % r[1]
                        for k, (b, c) in list(cache.items()):
                            if b == nm:
                                raise ValueError('address base rewritten: ' + body)
                if i.kind == 'vmem':
                    d = i.dst if 'atomic' not in i.op else set()
                    vm.append((d, ann.get('tag')))
                    assert len(vm) <= 63 or True
                elif i.kind == 'ds':
                    lg.append((i.dst, ann.get('tag')))
            out(body)

        def tree(regs, tmp):
            o = []
            regs = list(regs)
            if len(regs) == 1:
                return o, regs[0]
            cur = regs.pop(0)
            while regs:
                if len(regs) >= 2:
                    o.append('v_max3_u32 v%d, v%d, v%d, v%d' % (tmp, cur, regs.pop(0), regs.pop(0)))
                else:
                    o.append('v_max_u32 v%d, v%d, v%d' % (tmp, cur, regs.pop(0)))
                cur = tmp
            return o, cur

        for line in self.lines:
            body, _, com = line.partition(';')
            body = body.strip()
            ann = dict(ANN.findall(com))
            if body.startswith('@'):
                w = body.split()
                if w[0] == '@manual':
                    manual = w[1] == 'on'
                elif w[0] == '@forget':
                    cache, lru, m0 = {}, [], None
                elif w[0] == '@wait':
                    nv = nl = None
                    for x in w[1:]:
                        k, _, tags = x.partition(':')
                        tags = tags.split(',')
                        q = vm if k == 'vm' else lg
                        n = need(q, lambda e: '*' in tags or e[1] in tags)
                        if k == 'vm':
                            nv = n
                        else:
                            nl = n
                    emit_wait(nv, nl)
                elif w[0] == '@mark':
                    if self.ts:
                        if pend_ts is not None:
                            out('v_writelane_b32 v0, s100, %d' % pend_ts)
                        pend_ts = None
                        if w[1] != 'flush':
                            pend_ts = self.marks.setdefault(w[1], len(self.marks))
                            assert pend_ts < 64
                            out('s_memrealtime s[100:101]')
                elif w[0] == '@check':
                    f, g, tmp = w[1], int(w[2]), int(w[3])
                    regs = [int(x) for x in w[4].split(',')]
                    tr, top = tree(regs, tmp)
                    cmp_ = 'v_cmp_eq_u32 vcc, -1, v%d' % top
                    if len(w) > 5:
                        cmp_ = 'v_cmp_ne_u32 vcc, %s, v%d' % (w[5], top)
                    self.nstub += 1
                    sl, bl = 'Lre%d' % self.nstub, 'Lok%d' % self.nstub
                    for t in tr + [cmp_]:
                        emit(t, {})
                    out('s_cbranch_vccnz %s' % sl)
                    out(bl + ':')
                    ent = fam.get(f, [])
                    assert any(e[0] == g for e in ent), ('check without loads', f, g)
                    st = [sl + ':', 's_cmp_eq_u32 s%d, 0' % self.bud, 's_cbranch_scc1 %s' % bl,
                          's_sub_u32 s%d, s%d, 1' % (self.bud, self.bud)]
                    dma = any('{m0=' in e[1] for e in ent)
                    if dma:
                        st.append('s_mov_b32 s%d, m0' % self.sm)
                    st.append('s_waitcnt vmcnt(0) lgkmcnt(0)')
                    for e in ent:
                        if not e[1].startswith('ds_'):
                            st += self._plain(e[1])
                    st.append('s_waitcnt vmcnt(0)')
                    ds = [e[1] for e in ent if e[1].startswith('ds_')]
                    if ds:
                        st += ds + ['s_waitcnt lgkmcnt(0)']
                    if dma:
                        st.append('s_mov_b32 m0, s%d' % self.sm)
                    st += tr + [cmp_, 's_cbranch_vccnz %s' % sl, 's_branch %s' % bl]
                    stubs.append(st)
                    fam[f] = [e for e in ent if e[0] != g]
                elif w[0] == '@stubs':
                    for f, e in fam.items():
                        assert not e, ('unverified loads', f, e)
                    for st in stubs:
                        for t in st:
                            out(t)
                    stubs = []
                else:
                    raise ValueError(line)
                continue
            if body.endswith(':') or body.startswith('.'):
                out(body)
                continue
            if 'fam' in ann:
                f, g = ann['fam'].split('.')
                fam.setdefault(f, []).append((int(g), body))
            a = ADDR.search(M0.sub('', body))
            if a:
                assert not manual
                base, c = a.group(1), int(a.group(2), 0)
                mm = M0.search(body)
                cand = [(k, c - kc) for k, (kb, kc) in cache.items() if kb == base and 0 <= c - kc <= 4080]
                pick = None
                if mm:
                    lb, lc = mm.group(1), int(mm.group(2), 0)
                    for k, imm in cand:
                        if m0 == (lb, lc - imm):
                            pick = (k, imm)
                    if pick is None:
                        for k, imm in cand:
                            if lc - imm >= 0:
                                pick = (k, imm)
                elif cand:
                    pick = cand[0]
                seta = None
                if pick is None:
                    free = [k for k in self.pool if k not in cache]
                    k = free[0] if free else lru[0]
                    cache[k] = (base, c)
                    seta = self._setadd('s%d' % k, base, c)
                    pick = (k, 0)
                k, imm = pick
                if k in lru:
                    lru.remove(k)
                lru.append(k)
                if mm:
                    if m0 != (lb, lc - imm):
                        m0 = (lb, lc - imm)
                        out(self._setadd('m0', lb, lc - imm))
                    body = M0.sub('', body).strip()
                if seta:
                    out(seta)
                body = ADDR.sub('s%d' % k, body)
                if imm:
                    if ' offen' in body:
                        body = body.replace(' offen', ' offen offset:%d' % imm)
                    else:
                        body = re.sub(r'(s%d)\b' % k, r'\1 offset:%d' % imm, body, count=1)
            emit(body, ann)
        assert not stubs
```

```python
QA_, QBT, VT_ = 96, 100, 104
aFILL, aQB, aK, aV1, aV2 = 224, 228, 232, 240, 248
P0, P1 = 80, 84
WRING = (224, 232, 236, 228, 240, 248, 244, 252)
LO_, HI_ = 0x21800000, 0x53800000
BADA = 54


def wo_read(n):
    i, j = (n & 15) >> 1, 1 - (n & 1)
    return 'ds_read_b128 %s, v%d offset:%d' % (a_(WRING[n & 7], 4), VWP, j * REG + (i >> 2) * 4 * PAIR + (i & 3) * K)


def norm(o):
    return (['v_rcp_f32 v%d, v%d' % (o + 9, o + 8)] + ['v_mul_f32 v%d, v%d, v%d' % (o + i, o + i, o + 9) for i in range(8)] +
            ['v_cvt_pk_bf16_f32 v%d, v%d, v%d' % (o + i, o + 2 * i, o + 2 * i + 1) for i in range(4)])


def o_load(L, X, i):
    d = ((B3, B6), (B4, B3))[X][i >> 2] + 4 * (i & 3)
    return ld(v(d, 4), L16, SOL, G.LB0 + L * G.LSTR + G.O_F + 32 * K * X + K * i, 'fam=o%d%d.%d' % (L, X, i >> 2))


def wq_dma(j):
    return [dma(L16, SWQ, j * 512 * K + 16 * K * (i >> 2) + K * (i & 3), SLW, WQR[j] * REG + 4 * PAIR * (i >> 2) + K * (i & 3),
                'tag=wq', sc=False) for i in range(8)]


def attention(env, L, q):
    globals().update(env)
    i0, end, epB = q
    lb = G.LB0 + L * G.LSTR
    f = 'kv%d_' % L
    NV = 64 + NS
    vis, qs = [], []
    for t in range(NV):
        for x in ((0,) if t < NS else (1,) if t >= 64 else (0, 1)):
            vis.append(t)
            qs.append(x)
    last = {t: u for u, t in enumerate(vis)}
    first = {t: u for u, t in reversed(list(enumerate(vis)))}
    lastq = [max(u for u in range(128) if qs[u] == x) for x in range(2)]
    firstq = [min(u for u in range(128) if qs[u] == x) for x in range(2)]
    Q = (v(QA_, 4), a_(aQB, 4))
    OO = (B3, B4)
    SS = (B1, B2)

    def chunk(n):
        return piece(f, n, SKV, lb + 16 * K * n, 4 * n * PAIR)

    def kread(t):
        j = t & 63
        return lrd(a_(aK + 4 * (t & 1), 4), (j >> 1) * PAIR + (j & 1) * 2 * K, 'tag=k%d' % t)

    def vread(t, hf):
        j = t & 63
        pr = j >> 1
        return 'ds_read_b128 %s, v%d offset:%d ;tag=v%d_%d' % (a_((aV2 if hf else aV1) + 4 * (t & 1), 4),
                                                               VA + 4 * (pr >> 4) + 2 * (j & 1) + hf, (pr & 15) * PAIR, t, hf)

    c0 = chunk(0) + [ld(Q[0], L16, SQ, lb, 'fam=qa%d.0' % L)] + chunk(1)
    kv0 = OPT.get('kv0', 40)
    pos = i0[1] + kv0
    while c0 and pos < end:
        S.at(pos, c0.pop(0))
        pos += 2
    skip = max(0, pos - end) if len(c0) == 9 else 0
    c0 += ['BAR'] + chunk(2) + chunk(3)
    ep = []
    seen = False
    for k, t in enumerate(epB):
        ep.append(t)
        seen = seen or isinstance(t, list)
        if c0 and c0[0] == 'BAR' and seen:
            c0.pop(0)
        if c0 and c0[0] != 'BAR' and k >= skip and (k - skip) % 4 == 0:
            ep.append(c0.pop(0))
    late = c0
    S.at(end, *ep)
    S.at(end, '@mark a%dw' % L)
    va, vb = verify(f, 0, 0, B2), verify(f, 1, 4 * PAIR, B2 + 8)
    S.at(end, *[t for t in late if 'fam=%s.0' % f in t or 'fam=%s.1' % f in t or 'fam=qa' in t])
    late = [t for t in late if not ('fam=%s.0' % f in t or 'fam=%s.1' % f in t or 'fam=qa' in t)]
    S.at(end, va[0], vb[0], va[1], vb[1], chk('qa%d' % L, 0, [QA_]), 's_barrier', '@mark a%ds' % L,
         kread(0), kread(1), vread(0, 0), vread(0, 1), vread(1, 0))
    k = S.add(mf(v(SS[0], 16), a_(aK, 4), Q[0], '0'))
    S.at(k, kread(2), vread(1, 1))

    slots = {}

    def put(u, items, per=2):
        for t in items:
            while len(slots.setdefault(u, [])) >= per:
                u += 1
            slots[u].append(t)
        return u

    extra = {}

    def mid(u, *items):
        extra.setdefault(u, []).extend(items)

    put(0, late)
    ub1 = last[14] - 2
    for n in (2, 3):
        w = verify(f, n, 4 * n * PAIR, VT_)
        mid(ub1 - 7 + 2 * n, w[0])
        mid(ub1 - 6 + 2 * n, w[1])
    mid(ub1, 's_barrier')
    uq = firstq[1] - 1
    put(uq - OPT.get('qb', 7), [ld(v(QBT, 4), L16, SQ, lb + 64 * K, 'fam=qb%d.0' % L)])
    mid(uq - 1, chk('qb%d' % L, 0, [QBT]), ['v_accvgpr_write_b32 a%d, v%d' % (aQB + i, QBT + i) for i in range(4)])
    mid(1, ['v_accvgpr_write_b32 a%d, -1' % (aFILL + i) for i in range(4)])
    fills = [G.LB0 + G.X1_F + L * G.LSTR + (k << 20) for k in range(9 if L else 19)] + ([] if L else [G.STF])
    u = put(uq, [st(a_(aFILL, 4), L16, SFILL, c, 'tag=fill') for c in fills])
    ub2 = last[30] - 2
    u = put(max(u, ub2 - 17), chunk(4) + chunk(5) + chunk(6) + chunk(7))
    for n in range(4, 8):
        w = verify(f, n, 4 * n * PAIR, VT_)
        mid(ub2 - 15 + 2 * n, w[0])
        mid(ub2 - 14 + 2 * n, w[1])
    assert u <= ub2 - 7, u
    mid(ub2, 's_barrier')
    mid(ub2 + 1, ['@wait vm:fill', 'v_mov_b32 v%d, 1' % VT_, 's_mov_b64 exec, 1',
                  'buffer_atomic_add v%d, off, s[4:7], {s%d+0x%x} sc1' % (VT_, SCTR, G.CTR + 0x4000 * L), 's_mov_b64 exec, -1'])
    ub3 = last[45] + 3
    mid(ub3, 's_barrier')
    put(ub3 + 1, [dma(LW, (SWOA, SWOB)[j], K * i, SLW, (1 + j) * REG + 4 * PAIR * (i >> 2) + K * (i & 3), 'tag=wo', sc=False)
                  for j in range(2) for i in range(8)], per=1)
    ww = [ld(v(WV + 4 * i, 4), L16, SW1, K * i, sc=False) for i in range(32)]
    if not L:
        ww = [ld(a_(8 * i + 4 * j, 4), LW, (SW2A, SW2B)[j], K * i, sc=False) for i in range(28) for j in range(2)] + ww
    ue = lastq[0] - 2
    for k, t in enumerate(ww):
        put(u + 1 + k * (ue - u - 1) // len(ww), [t])
    if not L:
        ub4 = last[61] + 3
        mid(ub4, 's_barrier')
        put(ub4 + 1, wq_dma(0), per=1)
    un = lastq[0] + 2
    mid(un, 'v_subrev_u32 v%d, 0x%x, v%d' % (CT, LO_, B3 + 8), 'v_cmp_lt_u32 vcc, 0x%x, v%d' % (HI_ - LO_, CT),
        's_mov_b64 %s, %s' % (s(BADA, 2), '-1' if OPT.get('slow') else 'vcc'))
    mid(un, *norm(B3))
    mid(un, ['s_not_b64 exec, %s' % s(BADA, 2), st(v(B3, 4), L16, SOS, lb), 's_mov_b64 exec, -1'], '@mark a%dA' % L)
    mid(un + 1, 'v_lshlrev_b32 v%d, 4, v%d' % (VT_, L16),
        'buffer_load_dword v%d, v%d, s[4:7], {0+0x%x} offen sc1 ;fam=ct%d.0' % (VT_ + 1, VT_, G.CTR + 0x4000 * L, L))
    uo = OPT.get('uo', 121)
    mid(uo - 1, chk('ct%d' % L, 0, [VT_ + 1], '16'))
    put(uo, [o_load(L, 0, i) for i in range(8)])
    mid(120, ['@wait vm:wo', wo_read(0)])

    for u in range(128):
        t, x = vis[u], qs[u]
        cur, nxt = SS[u & 1], SS[1 - (u & 1)]
        sl = list(slots.get(u, []))

        def E(a, b):
            return ['v_exp_f32 v%d, v%d' % (cur + i, cur + i) for i in range(a, b)]

        w = []
        if u == first[t]:
            tags = ['v%d_0' % t, 'v%d_1' % (t if last[t] > u else t - 1), 'k%d' % (t + 1)]
            w = ['@wait lg:' + ','.join(tags)]
        if u < 127:
            tn = vis[u + 1]
            k = S.add(mf(v(nxt, 16), a_(aK + 4 * (tn & 1), 4), Q[qs[u + 1]], '0'))
            S.before(k, *w)
            rd = u + 1 == last[tn]
            if rd:
                S.at(k, kread(tn + 2) if tn + 2 < NV else [wo_read(1)] if tn + 2 == NV else [wo_read(2), wo_read(3)])
            if sl and (not rd or len(sl) > 1):
                S.at(k, sl.pop(0))
        S.at(k, *E(0, 4))
        if u:
            tp, xp = vis[u - 1], qs[u - 1]
            k = S.add(mf(v(OO[xp], 16), a_(aV2 + 4 * (tp & 1), 4), v(P1, 4), v(OO[xp], 16)))
            if u - 1 == last[tp]:
                S.at(k, vread(tp + 2, 1) if tp + 2 < NV else wo_read(5))
        S.at(k, *extra.get(u, []))
        S.at(k, *E(4, 8))
        S.at(k, *['v_cvt_pk_bf16_f32 v%d, v%d, v%d' % (P0 + i, cur + 2 * i, cur + 2 * i + 1) for i in range(4)])
        S.at(k, *E(8, 10))
        k = S.add(mf(v(OO[x], 16), a_(aV1 + 4 * (t & 1), 4), v(P0, 4), '0' if u == firstq[x] else v(OO[x], 16)))
        if u == last[t]:
            S.at(k, vread(t + 2, 0) if t + 2 < NV else wo_read(4 if t + 2 == NV else 6))
        S.at(k, *sl)
        S.at(k, *E(10, 16))
        S.at(k, *['v_cvt_pk_bf16_f32 v%d, v%d, v%d' % (P1 + i, cur + 8 + 2 * i, cur + 8 + 2 * i + 1) for i in range(4)])
    assert max(slots) < 128 and max(extra) < 128
    k = S.add(mf(v(B4, 16), a_(aV2 + 4 * ((NV - 1) & 1), 4), v(P1, 4), v(B4, 16)))
    S.at(k, wo_read(7), '@mark a%dE' % L,
         'v_subrev_u32 v%d, 0x%x, v%d' % (CT, LO_, B4 + 8), 'v_cmp_lt_u32 vcc, 0x%x, v%d' % (HI_ - LO_, CT),
         's_or_b64 %s, %s, vcc' % (s(BADA, 2), s(BADA, 2)), 's_cbranch_scc1 att_slow%d' % L, 'att_back%d:' % L)
    return norm(B4) + [st(v(B4, 4), L16, SOS, lb + 32 * K)]


def slow_path(env, L):
    globals().update(env)
    lb = G.LB0 + L * G.LSTR
    KB_, V1, V2, QF = B2, B2 + 4, B2 + 8, B2 + 12
    LD = 'buffer_load_dwordx4'
    p.label('att_slow%d' % L)
    p('s_mov_b32 s56, 0x0000ffff')
    p('s_mov_b32 s57, 0x0000ffff')
    p('s_lshl_b32 s60, s3, 12')
    p('s_sub_u32 s60, s%d, s60' % SKV)
    p('s_add_u32 s60, s60, 0x%x' % lb)
    for i in range(8):
        p('v_mov_b32 v%d, s%d' % (V1 + i, ONES))
    for x in range(2):
        l1, l2 = 'Lmx%d%d' % (L, x), 'Lpv%d%d' % (L, x)
        p('s_add_u32 s58, s%d, 0x%x' % (SQ, lb + 64 * K * x))
        p('%s %s, v%d, s[4:7], s58 offen sc1' % (LD, v(QF, 4), L16))
        p('v_mov_b32 v%d, 0xff800000' % CT)
        p('s_mov_b32 s58, s60')
        p('s_mov_b32 s59, 0')
        p.label(l1)
        p('%s %s, v%d, s[4:7], s58 offen sc1' % (LD, v(KB_, 4), L16))
        p('s_add_u32 s58, s58, 2048')
        p('s_add_u32 s59, s59, 1')
        p('s_waitcnt vmcnt(0)')
        p(mf(v(B1, 16), v(KB_, 4), v(QF, 4), '0'))
        p('s_cmp_lt_u32 s59, 64')
        for i in range(8):
            p('v_max3_f32 v%d, v%d, v%d, v%d' % (CT, CT, B1 + 2 * i, B1 + 2 * i + 1))
        p('s_cbranch_scc1 %s' % l1)
        p('v_mov_b32 v%d, v%d' % (P0, CT))
        p('v_permlane32_swap_b32 v%d, v%d' % (CT, P0))
        p('v_max_f32 v%d, v%d, v%d' % (CT, CT, P0))
        for i in range(16):
            p('v_mov_b32 v%d, 0' % (B4 + i))
        p('s_mov_b32 s58, s60')
        p('s_mov_b32 s59, 0')
        p.label(l2)
        p('%s %s, v%d, s[4:7], s58 offen sc1' % (LD, v(KB_, 4), L16))
        p('s_mov_b64 exec, s[56:57]')
        p('%s %s, v%d, s[4:7], s58 offen sc1' % (LD, v(V1, 4), VA))
        p('%s %s, v%d, s[4:7], s58 offen sc1' % (LD, v(V2, 4), VA + 1))
        p('s_mov_b64 exec, -1')
        p('s_add_u32 s58, s58, 2048')
        p('s_add_u32 s59, s59, 1')
        p('s_waitcnt vmcnt(0)')
        p(mf(v(B1, 16), v(KB_, 4), v(QF, 4), '0'))
        p('s_cmp_lt_u32 s59, 64')
        for i in range(16):
            p('v_sub_f32 v%d, v%d, v%d' % (B1 + i, B1 + i, CT))
        for i in range(16):
            p('v_exp_f32 v%d, v%d' % (B1 + i, B1 + i))
        for i in range(8):
            p('v_cvt_pk_bf16_f32 v%d, v%d, v%d' % (P0 + i, B1 + 2 * i, B1 + 2 * i + 1))
        p(mf(v(B4, 16), v(V1, 4), v(P0, 4), v(B4, 16)))
        p(mf(v(B4, 16), v(V2, 4), v(P1, 4), v(B4, 16)))
        p('s_cbranch_scc1 %s' % l2)
        if x == 0:
            p(norm(B4))
            p('s_add_u32 s58, s%d, 0x%x' % (SOS, lb))
            p('buffer_store_dwordx4 %s, v%d, s[4:7], s58 offen sc1' % (v(B4, 4), L16))
    p('s_branch att_back%d' % L)
```

```python
import gen3_att as A

XT = 85
GT = 80
SADR = 47


def mix(base, items, start, step):
    out = []
    items = list(items)
    for k, t in enumerate(base):
        if items and k >= start and (k - start) % step == 0:
            out.append(items.pop(0))
        out.append(t)
    return out + items


def chain(env, L, normB):
    globals().update(env)
    lb = G.LB0 + L * G.LSTR
    O = OPT.get
    OF = ((B3, B6), (B4, B3))
    WT = ((B1, B2), (B6, B2))
    TOFF = (0, 64 * K, 32 * K, 96 * K)

    def x1_dma(tt):
        f = 'x%d%d_' % (L, tt)
        return [t for hf in range(2) for t in piece(f, hf, SX1, lb + G.X1_F + TOFF[tt] + 16 * K * hf, X1R[tt] * REG + 4 * PAIR * hf)]

    def x1_ver(tt, t0, t1):
        f = 'x%d%d_' % (L, tt)
        a, b = verify(f, 0, X1R[tt] * REG, t0), verify(f, 1, X1R[tt] * REG + 4 * PAIR, t1)
        return a[0] + b[0], [a[1], b[1], 's_barrier']

    def x_read(n):
        return lrd(a_(AR + 4 * (n % NR), 4), X1R[n >> 5] * REG + frag(n & 31))

    def st_load(X):
        return [ld(v(B4 + 4 * q, 4), SADR, SSTC, G.ST0 + (2 * L + 1) * 0x20000 + 2 * K * X + 512 * q, 'fam=s1%d%d.0' % (L, X))
                for q in range(4)]

    w0 = []
    for X in range(2):
        w0.append(S.n())
        for n in range(16):
            i, j = n >> 1, 1 - (n & 1)
            acc = v(WT[X][j], 16)
            o = OF[X][i >> 2]
            k = S.add(mf(acc, a_(A.WRING[n & 7], 4), v(o + 4 * (i & 3), 4), '0' if i == 0 else acc))
            if (n & 7) == 0:
                S.before(k, chk('o%d%d' % (L, X), i >> 2, [o + 4 * q for q in range(4)]))
            if 16 * X + n + 8 < 32:
                S.at(k, A.wo_read(n + 8))
        a, b = xch(WT[X][0], WT[X][1], X, False, XT, lb + G.X1_F, 2 * L + 1)
        k = S.add('@mark w%d%s' % (L, 'ab'[X]))
        if X == 0:
            S.before(w0[0], *normB)
            S.before(w0[0], '@mark a%dB' % L)
            S.pre[w0[0]] = S.pre[w0[0]][1:] + S.pre[w0[0]][:1]
            S.at(k, *mix(a + ['@mark w%dx' % L] + b, [A.o_load(L, 1, i) for i in range(8)], O('ob', 40), O('obs', 3)))
            S.at(k, '@mark w%dy' % L)
        else:
            for q, t in enumerate(x1_dma(0)):
                S.at(w0[1] + O('xa0', 0) + 2 * q if O('xa0', 0) + 2 * q < 16 else k, t)
            cs = ['v_xor_b32 v%d, 512, v%d' % (GT, L16), ld(a_(248, 4), L16, SCS1, 0, sc=False), ld(a_(252, 4), GT, SCS1, 0, sc=False)]
            a = mix(a, x1_dma(1), 6, 3)
            ad = ['v_and_b32 v%d, 512, v%d' % (SADR, L16), 'v_mad_u32_u24 v%d, v%d, 7, v%d' % (SADR, SADR, L16)]
            r, c = x1_ver(0, B6 + 8, GT + 2)
            S.at(k, *(a + ['@mark w%dX' % L] + ad + mix(b, st_load(0), 0, 3) + cs + ['@mark w%dY' % L] + r + c + [x_read(n) for n in range(NR)]))

    k0c = -2.0 * 0.7978845608028654 * 1.4426950408889634
    k1c = k0c * 0.044715
    CB = (B2, B6)

    def st_math(X):
        b, c = B4, CB[X] + 4
        m = [chk('s1%d%d' % (L, X), 0, range(b, b + 16))] + psum(b, 8) + stats_tail(b, CB[X], True)
        m += ['v_mul_f32 v%d, v%d, v%d' % (b + 4, b + 2, b + 2),
              'v_mul_f32 v%d, %s, v%d' % (c, f2u(k0c), b + 2), 'v_mul_f32 v%d, %s, v%d' % (c + 3, f2u(k0c), b + 2),
              'v_mul_f32 v%d, v%d, v%d' % (b + 4, b + 4, b + 2),
              'v_mov_b32 v%d, v%d' % (c + 2, b + 3), 'v_mov_b32 v%d, v%d' % (c + 5, b + 3),
              'v_mul_f32 v%d, %s, v%d' % (c + 1, f2u(k1c), b + 4), 'v_mul_f32 v%d, %s, v%d' % (c + 4, f2u(k1c), b + 4)]
        m += ['v_permlane32_swap_b32 v%d, v%d' % (c + i, c + 3 + i) for i in (0, 2, 1)]
        return m

    def gelu(tt):
        a0, c = (B1, B3)[tt & 1], CB[tt >> 1] + 4 + 3 * (tt & 1)
        o = []
        for g in range(2):
            r, t = a0 + 8 * g, GT
            R = range(8)
            o += ['v_mul_f32 v%d, v%d, v%d' % (t + i, r + i, r + i) for i in R]
            o += ['v_fma_f32 v%d, v%d, v%d, v%d' % (t + i, t + i, c + 1, c) for i in R]
            o += ['v_mul_f32 v%d, v%d, v%d' % (t + i, t + i, r + i) for i in R]
            o += ['v_exp_f32 v%d, v%d' % (t + i, t + i) for i in R]
            o += ['v_fma_f32 v%d, v%d, v%d, v%d' % (t + i, t + i, c + 2, c + 2) for i in R]
            o += ['v_rcp_f32 v%d, v%d' % (t + i, t + i) for i in R]
            o += ['v_mul_f32 v%d, v%d, v%d' % (t + i, t + i, r + i) for i in R]
            o += ['v_cvt_pk_bf16_f32 v%d, v%d, v%d' % (r + i, t + 2 * i, t + 2 * i + 1) for i in range(4)]
            o.append(st(v(r, 4), L16, SHS, lb + G.H_F + 112 * K * (TOFF[tt] // (32 * K)) + K * g))
        return o

    m0 = []
    CORR = 28
    for tt in range(4):
        m0.append(S.n())
        acc = v((B1, B3)[tt & 1], 16)
        for kb in range(32):
            n = 32 * tt + kb
            k = S.add(mf(acc, v(slot(kb), 4), a_(AR + 4 * (n % NR), 4), '0' if kb == 0 else acc))
            if n + NR < 128:
                S.at(k, x_read(n + NR))
            if kb == CORR:
                S.add(mf(acc, a_(248 + 4 * (tt & 1), 4), v(CB[tt >> 1], 4), acc))
        S.before(m0[tt], '@mark m%d%d' % (L, tt))
    m0.append(S.n())
    PUB = 32 - NR - 1
    for tt in range(3):
        r, c = x1_ver(tt + 1, B2 + 10, B6 + 10)
        S.spread(r, m0[tt] + PUB - 5, m0[tt] + PUB - 3)
        S.at(m0[tt] + PUB - 1, c[0])
        S.at(m0[tt] + PUB, c[1], c[2])
    for tt in range(1, 4 if not L else 2):
        S.at(m0[tt] + 1, 's_barrier')
    xb = O('xb', 20)
    for q, t in enumerate(x1_dma(2)):
        S.at(m0[0] + xb + 2 * q, t)
    for q, t in enumerate(x1_dma(3) + st_load(1)):
        S.at(max(m0[1] + 2, m0[0] + xb + 16) + 2 * q, t)
    S.fill(st_math(0), m0[0] + O('sa', 4), hi=m0[0] + CORR - 1)
    if not L:
        for j in (1, 2):
            for q, t in enumerate(A.wq_dma(j)):
                S.at(m0[1 + j] + 2 + 2 * q, t)

    MT = ((B4, B2), (B1, B3))

    def h_load(X, i):
        return ld(v(slot(28 * X + i), 4), L16, SHL, lb + G.H_F + 112 * K * X + K * i, 'fam=h%d%d.%d' % (L, X, i >> 2))

    kg = S.add('@mark m%dE' % L)
    n0 = []
    for X in range(2):
        n0.append(S.n())
        for n in range(56):
            i, j = n >> 1, 1 - (n & 1)
            acc = v(MT[X][j], 16)
            k = S.add(mf(acc, a_(8 * i + 4 * j, 4), v(slot(28 * X + i), 4), '0' if i == 0 else acc))
            if (n & 7) == 0:
                S.before(k, chk('h%d%d' % (L, X), i >> 2, [slot(28 * X + i + q) for q in range(4)]))
        S.before(n0[2 * X], '@mark n%d%s' % (L, 'AB'[X]))
        kx = S.add('@mark n%d%s' % (L, 'ab'[X]))
        n0.append(kx)
    n0 = (n0[0], n0[2], n0[1], n0[3])
    ha = O('ha', 18)
    hl = [h_load(0, i) for i in range(28)]
    pos = m0[3] + ha
    q = 0
    while pos < kg:
        assert q < pos - m0[3]
        S.at(pos, hl[q])
        pos += 2
        q += 1
    g3 = gelu(3)
    ng = O('g3', len(g3))
    nh = O('hg', 12)
    S.at(kg, *mix(g3[:ng], hl[q:q + nh], 4, max(1, (ng - 8) // nh)))
    pos = n0[0]
    for t in hl[q + nh:]:
        S.at(pos, t)
        pos += 2
    pos = max(pos, n0[0] + O('hb', 16))
    for i in range(28):
        pos = max(pos, n0[0] + 2 * i - 7)
        S.at(pos, h_load(1, i))
        assert pos < n0[1] + 2 * (i & ~3) - 4
        pos += 2
    hend = pos
    if g3[ng:]:
        S.fill(g3[ng:], n0[0], O('bg3', 24), hi=n0[2] - 1)
    S.spread(st_math(1), m0[2] + O('sb', 8), m0[2] + CORR - 1)
    for tt in range(3):
        S.fill(gelu(tt), m0[tt + 1] + 1, O('bg%d' % tt, 24), hi=m0[tt + 2] - 1)

    dst = None if L else lb + G.LSTR + G.X_F
    fin = []
    if L:
        fin = ['v_and_b32 v%d, 511, v%d' % (XT + 2, L16), 'v_lshlrev_b32 v%d, 6, v%d' % (XT + 2, XT + 2),
               'v_lshrrev_b32 v%d, 5, v%d' % (XT, L16), 'v_and_or_b32 v%d, v%d, 16, v%d' % (XT + 2, XT, XT + 2)]
    a, b = xch(B4, B2, 0, True, XT, dst, 2 * L + 2)
    nxt = []
    if L:
        b = ['s_barrier']
    else:
        b = ['@wait vm:wq'] + b
        nxt = qkv_addr() + qkv_cs() + [wq_read(n) for n in range(NR)]
    S.at(n0[2] - 1, *fin)
    na = O('na', 0)
    S.at(n0[2], *a[:na])
    last = S.fill(a[na:] + ['@mark n%dx' % L], n0[1], O('bna', 40), hi=n0[3] - 1)
    last = S.fill(b + nxt, last, 24, hi=n0[3] - 1)
    a, b = xch(B1, B3, 1, True, XT, dst, 2 * L + 2)
    if L:
        S.at(n0[3], *a)
        return None
    xl = [xq_load(L + 1, 0, i) for i in range(16)]
    pos = max(hend, n0[1] + O('xq', 40))
    q = 0
    while pos < n0[3] and q < 16:
        assert q < 4 or pos >= n0[1] + 2 * (q - 4) + 1
        S.at(pos, xl[q])
        pos += 2
        q += 1
    e = a + ['@mark n%dX' % L] + b
    nb = O('nb', len(e))
    S.at(n0[3], *mix(e[:nb], xl[q:], 2, 4))
    r = qkv(L + 1)
    if e[nb:]:
        last = S.fill(e[nb:], r[0][0], O('bnb', 40))
        assert last < r[0][0] + 28
    for i in range(16):
        S.at(r[0][0] + O('xq2', 18) + 2 * i, xq_load(L + 1, 1, i))
    return r
```

```python
from asmlib import v, a_, s
from asm3 import Prog3, Sched, cost

(SLAB, SOL, SSTW, SSTC, SSTQ, SX1, SLW, SHS, SHL, SXQ, SP, SV, SQ, SKV, SOS, SW1, SW2A, SW2B, SWOA, SWOB, SWQ, SWQ0,
 SCS1, SCSP, SCSV, SFILL, SCTR, SQS, SLW0, SWP, SWR, SWV, SOUT, SFLAG) = range(16, 50)
SMASK = 50
ONES = 52
BUD = 94
L16, L16B, LQ, LW, VVS, VCK, CT = 1, 2, 3, 4, 5, 6, 7
RES = 8
B1, B2, B3, B4, B5, B6 = 16, 32, 48, 64, 80, 96
VA = 88
B2F = 112
XR, XW, VWP, L16C, SW4, VST = 120, 121, 124, 125, 126, 127
WV = 128
AR = 224
PAIR = 4112
REG = 8 * PAIR
TOP = 4 * REG
SXO = 24576
WQR = (3, 1, 2)
X1R = (0, 1, 2, 0)
K = 1024


def gen_main(P, name, G):
    MFMA, f2u, OPT = G.MFMA, G.f2u, G.OPT
    p = Prog3(range(80, 92), (92, 93), BUD, G.TS)
    S = Sched()
    NS = OPT.get('S', 16)

    def mf(d, a, b, c):
        return '%s %s, %s, %s, %s' % (MFMA, d, a, b, c)

    def ld(dst, va, base, c, ann='', sc=True, n=4):
        return 'buffer_load_dword%s %s, v%d, s[4:7], {s%d+0x%x} offen%s ;%s' % (
            'x%d' % n if n > 1 else '', dst, va, base, c, ' sc1' if sc else '', ann)

    def st(src, va, base, c, ann='', n=4):
        return 'buffer_store_dword%s %s, v%d, s[4:7], {s%d+0x%x} offen sc1 ;%s' % ('x%d' % n if n > 1 else '', src, va, base, c, ann)

    def dma(va, base, c, lb, lc, ann='', sc=True):
        return 'buffer_load_dwordx4 v%d, s[4:7], {s%d+0x%x} offen%s lds {m0=s%d+0x%x} ;%s' % (va, base, c, ' sc1' if sc else '', lb, lc, ann)

    def lrd(dst, off, ann=''):
        return 'ds_read_b128 %s, v%d offset:%d ;%s' % (dst, L16 if off < 65536 else L16B, off & 0xffff, ann)

    def frag(n):
        return (n >> 2) * PAIR + (n & 3) * K

    def chk(f, g, regs, ne=''):
        return '@check %s %d %d %s %s' % (f, g, CT, ','.join(map(str, regs)), ne)

    def piece(f, g, base, c, lc):
        return [dma(L16, base, c + K * i, SLW, lc + K * i, 'tag=%s%d fam=%s.%d' % (f, g, f, g)) for i in range(4)]

    def verify(f, g, lc, t):
        return ['v_add_u32 v%d, 0x%x, v%d' % (t + 4, lc, VCK),
                ['@wait vm:%s%d' % (f, g),
                 'ds_read2st64_b32 %s, v%d offset0:0 offset1:4 ;fam=%s.%d' % (v(t, 2), t + 4, f, g)],
                'ds_read2st64_b32 %s, v%d offset0:8 offset1:12 ;fam=%s.%d' % (v(t + 2, 2), t + 4, f, g)], chk(f, g, range(t, t + 4))

    def stats_tail(b, tf, dbl):
        o = ['v_mul_f32 v%d, %s, v%d' % (b, f2u(-1.0 / 512), b),
             'v_mul_f32 v%d, %s, v%d' % (b + 1, f2u(1.0 / 512), b + 1),
             'v_fma_f32 v%d, -v%d, v%d, v%d' % (b + 1, b, b, b + 1),
             'v_max_f32 v%d, 0, v%d' % (b + 1, b + 1),
             'v_add_f32 v%d, %s, v%d' % (b + 4, f2u(1e-5), b + 1),
             'v_rsq_f32 v%d, v%d' % (b + 2, b + 4),
             'v_cvt_pk_bf16_f32 v%d, v%d, v%d' % (tf, b, b)]
        if dbl:
            o += ['v_mul_f32 v%d, v%d, v%d' % (b + 4, b + 2, b + 2),
                  'v_mul_f32 v%d, v%d, v%d' % (b + 4, b + 4, b + 1),
                  'v_add_f32 v%d, %s, v%d' % (b + 4, f2u(1e-5), b + 4),
                  'v_rsq_f32 v%d, v%d' % (b + 4, b + 4),
                  'v_lshlrev_b32 v%d, 16, v%d' % (b + 5, tf),
                  'v_mul_f32 v%d, v%d, v%d' % (b + 2, b + 2, b + 4)]
        else:
            o += ['v_lshlrev_b32 v%d, 16, v%d' % (b + 5, tf)]
        o += ['v_rcp_f32 v%d, v%d' % (b + 3, b + 2),
              'v_sub_f32 v%d, v%d, v%d' % (b + 5, b, b + 5),
              'v_cvt_pk_bf16_f32 v%d, v%d, v%d' % (b + 6, b + 2, b + 2),
              'v_cvt_pk_bf16_f32 v%d, v%d, v%d' % (tf + 1, b + 5, b + 3),
              'v_lshlrev_b32 v%d, 16, v%d' % (b + 6, b + 6),
              'v_and_b32 v%d, 0xffff0000, v%d' % (b + 5, tf + 1),
              'v_sub_f32 v%d, v%d, v%d' % (b + 6, b + 2, b + 6),
              'v_sub_f32 v%d, v%d, v%d' % (b + 5, b + 3, b + 5),
              'v_cvt_pk_bf16_f32 v%d, v%d, v%d' % (tf + 3, b + 2, b + 6),
              'v_cvt_pk_bf16_f32 v%d, v%d, 0' % (tf + 2, b + 5)]
        return o

    def psum(b, n):
        o = []
        while n > 1:
            n //= 2
            for i in range(2 * n):
                o.append('v_add_f32 v%d, v%d, v%d' % (b + i, b + i, b + 2 * n + i))
        return o

    def xch(T0, T1, X, bias, tmp, dst, stk):
        r = RES + 4 * X
        src = (T0 + 8, T1, T1 + 8)
        a = []
        for k in (1, 2, 0):
            for q in range(2):
                a.append('ds_write_b128 v%d, %s offset:%d ;tag=xw' % (XW + k, v(src[k] + 4 * q, 4), 2048 * k + K * q))
        for i in range(4):
            a += ['v_lshlrev_b32 v%d, 16, v%d' % (tmp, r + i), 'v_and_b32 v%d, 0xffff0000, v%d' % (tmp + 1, r + i),
                  'v_add_f32 v%d, v%d, v%d' % (T0 + 2 * i, T0 + 2 * i, tmp),
                  'v_add_f32 v%d, v%d, v%d' % (T0 + 2 * i + 1, T0 + 2 * i + 1, tmp + 1)]
        a.append(['@wait lg:xw', 's_barrier'])
        for q in range(2):
            for k in range(3):
                a.append('ds_read_b128 %s, v%d offset:%d' % (v(src[k] + 4 * q, 4), XR, 2048 * k + K * q))
        if bias:
            a += ['v_add_f32 v%d, v%d, v%d' % (T0 + i, T0 + i, B2F + i) for i in range(8)]
        for q in range(2):
            for k in range(3):
                a += ['v_add_f32 v%d, v%d, v%d' % (T0 + i, T0 + i, src[k] + i) for i in range(4 * q, 4 * q + 4)]
            a += ['v_cvt_pk_bf16_f32 v%d, v%d, v%d' % (r + i, T0 + 2 * i, T0 + 2 * i + 1) for i in (2 * q, 2 * q + 1)]
        if dst is None:
            a += ['v_permlane32_swap_b32 v%d, v%d' % (r, r + 2), 'v_permlane32_swap_b32 v%d, v%d' % (r + 1, r + 3),
                  'buffer_store_dwordx4 %s, v%d, s[12:15], {s%d+0x%x} offen' % (v(r, 4), tmp + 2, SOUT, 32 * K * X)]
            return a, []
        a.append(st(v(r, 4), L16, SLAB, dst + 32 * K * X))
        t = T1
        b = []
        for i in range(4):
            b += ['v_dot2_f32_bf16 v%d, v%d, s%d, %s' % (t, r + i, ONES, 'v%d' % t if i else '0'),
                  'v_dot2_f32_bf16 v%d, v%d, v%d, %s' % (t + 1, r + i, r + i, 'v%d' % (t + 1) if i else '0')]
        b += ['v_permlane32_swap_b32 v%d, v%d' % (t, t + 1), 'v_add_f32 v%d, v%d, v%d' % (t, t, t + 1),
              'ds_write_b32 v%d, v%d offset:%d ;tag=sw' % (SW4, t, SXO + K * X),
              ['@wait lg:sw', 's_barrier'],
              'ds_read_b128 %s, v%d offset:%d' % (v(t + 4, 4), L16C, SXO + K * X),
              'v_add_f32 v%d, v%d, v%d' % (t + 4, t + 4, t + 5), 'v_add_f32 v%d, v%d, v%d' % (t + 6, t + 6, t + 7),
              'v_add_f32 v%d, v%d, v%d' % (t + 4, t + 4, t + 6),
              ['s_mov_b64 exec, %s' % s(SMASK, 2), st(v(t + 4), VST, SSTW, G.ST0 + stk * 0x20000 + 2 * K * X, n=1), 's_mov_b64 exec, -1']]
        return a, b


    def slot(i):
        return WV + 4 * (i & 31)

    def xq_load(L, X, i):
        fa = 'fam=xq%d%d.%d' % (L, X, i >> 2) if L else ''
        return ld(v(slot((24 if X == 0 else 8) + i), 4), LQ, SXQ, G.LB0 + L * G.LSTR + G.X_F + 32 * K * X + K * i, fa, sc=L > 0)

    O67 = B3
    NR = 6
    QW = B5

    def qkv_cs():
        return [ld(a_(248, 4), L16, SCSP, 0, sc=False), ld(a_(252, 4), L16, SCSV, 0, sc=False)]

    def qkv_o67():
        return [['v_cmp_gt_u32 vcc, 512, v%d' % L16, 'v_mov_b32 v%d, s%d' % (O67 + 3, ONES),
                 'v_cndmask_b32 v%d, 0, v%d, vcc' % (O67 + 3, O67 + 3)]] + ['v_mov_b32 v%d, 0' % (O67 + i) for i in range(3)]

    def qkv_addr():
        return ['v_add_u32 v%d, s%d, v%d' % (QW + j, (SWP, SWR, SWV)[j], L16) for j in range(3)] + [
            'v_and_b32 v%d, 512, v%d' % (QW + 3, LQ), 'v_add_u32 v%d, v%d, v%d' % (QW + 3, QW + 3, LQ),
            'v_xor_b32 v%d, 256, v%d' % (QW + 4, XW + 1)]

    def wq_read(n):
        i, j = divmod(n % 48, 3)
        return 'ds_read_b128 %s, v%d offset:%d' % (a_(AR + 4 * (n % NR), 4), QW + j, frag(i))

    def qkv(L):
        lb = G.LB0 + L * G.LSTR
        ACC = ((B4, B2, B6), (WV + 96, WV + 112, WV))
        RR = (B1, WV + 16)
        SB = (slot(24), slot(8))
        TF = (slot(26), slot(10))
        SC = (QW + 5, QW + 6)
        i0 = []
        for X in range(2):
            i0.append(S.n())
            for n in range(48):
                i, j = divmod(n, 3)
                w, x, acc = a_(AR + 4 * (n % NR), 4), v(slot((24 if X == 0 else 8) + i), 4), v(ACC[X][j], 16)
                c = '0' if i == 0 else acc
                k = S.add(mf(acc, x, w, c) if j == 2 else mf(acc, w, x, c))
                if L and j == 0 and (i & 3) == 0:
                    S.before(k, chk('xq%d%d' % (L, X), i >> 2, [slot((24 if X == 0 else 8) + i + q) for q in range(4)]))
                if 48 * X + n + NR < 96:
                    if not L and not X and (n + NR) % 12 == 0 and n + NR < 48:
                        S.at(k, ['@wait vm:wq%d' % ((n + NR) // 12), 's_barrier'])
                    S.at(k, wq_read(n + NR))
                if n == 40:
                    S.add(mf(v(ACC[X][0], 16), a_(248, 4), v(TF[X], 4), v(ACC[X][0], 16)))
                    S.add(mf(v(RR[X], 16), v(TF[X], 4), v(O67, 4), '0'))
                if n == 42:
                    S.add(mf(v(ACC[X][2], 16), v(TF[X], 4), a_(252, 4), v(ACC[X][2], 16)))
            S.before(i0[X], '@mark q%d%s' % (L, 'AB'[X]))
        end = S.add('@mark q%dE' % L)
        for X in range(2):
            b = SB[X]
            f = 'sq%d%d' % (L, X)
            lds_ = [ld(v(b + 4 * q, 4), QW + 3, SSTQ, G.ST0 + 2 * L * 0x20000 + 2 * K * X + 512 * q, 'fam=%s.0' % f if L else '', sc=L > 0)
                    for q in range(2)]
            m = [chk(f, 0, range(b, b + 8))] if L else []
            m += psum(b, 4)
            m += ['v_mov_b32 v%d, v%d' % (b + 2, b), 'v_mov_b32 v%d, v%d' % (b + 3, b + 1),
                  'v_permlane32_swap_b32 v%d, v%d' % (b, b + 2), 'v_permlane32_swap_b32 v%d, v%d' % (b + 1, b + 3),
                  'v_add_f32 v%d, v%d, v%d' % (b, b, b + 2), 'v_add_f32 v%d, v%d, v%d' % (b + 1, b + 1, b + 3)]
            m += stats_tail(b, TF[X], False) + ['v_mul_f32 v%d, s%d, v%d' % (SC[X], SQS, b + 2)]
            S.at(i0[X] + 6, lds_[0])
            S.at(i0[X] + 8, lds_[1])
            S.spread(m + (qkv_o67() if X == 0 else []), i0[X] + 29, i0[X] + 39)
            own, oth, vt = ACC[X]
            e = ['ds_write_b128 v%d, %s offset:%d ;tag=xw' % (QW + 4, v(oth + 4 * q, 4), K * q) for q in range(4)]
            e += ['ds_write_b128 v%d, %s offset:%d ;tag=xw' % (XW + 1, v(vt + 8 + 4 * q, 4), 4 * K + K * q) for q in range(2)]
            e.append(['@wait lg:xw', 's_barrier'])
            e += ['ds_read_b128 %s, v%d offset:%d' % (v(oth + 4 * q, 4), XR, K * q) for q in range(4)]
            e += ['ds_read_b128 %s, v%d offset:%d' % (v(vt + 8 + 4 * q, 4), XR, 4 * K + K * q) for q in range(2)]
            for hh in range(3):
                a0, b0 = (own + 8 * hh, oth + 8 * hh) if hh < 2 else (vt, vt + 8)
                e += ['v_add_f32 v%d, v%d, v%d' % (a0 + i, a0 + i, b0 + i) for i in range(8)]
                e += ['v_mul_f32 v%d, v%d, v%d' % (a0 + i, a0 + i, SC[X] if hh < 2 else RR[X] + i) for i in range(8)]
                e += ['v_cvt_pk_bf16_f32 v%d, v%d, v%d' % (a0 + i, a0 + 2 * i, a0 + 2 * i + 1) for i in range(4)]
                e.append(st(v(a0, 4), LQ, SP, lb + 128 * K * hh + 64 * K * X) if hh < 2 else st(v(a0, 4), VVS, SV, lb + 64 * K * X))
            if X == 0:
                last = S.fill(['@mark q%dx' % L] + e + ['@mark q%ds' % L, 's_barrier'], i0[1] + 1)
                assert last < i0[1] + 30, last
            else:
                epB = e
        return i0, end, epB

    from gen3_att import attention, slow_path
    from gen3_chain import chain
    env = dict(globals())
    env.update(locals())
    from gen3_pro import prologue
    prologue(env)

    k = S.add('@mark top')
    S.at(k, *(qkv_addr() + [['@wait vm:wq0 lg:*', 's_barrier']] + [wq_read(n) for n in range(NR)]))
    q = qkv(0)
    for i in range(4):
        S.at(q[0][0] + 20 + i, 'v_lshlrev_b32 v%d, 16, v%d' % (B2F + 2 * i, 20 + i), 'v_and_b32 v%d, 0xffff0000, v%d' % (B2F + 2 * i + 1, 20 + i))
    for L in range(2):
        att = attention(env, L, q)
        q = chain(env, L, att)
    S.emit(p)
    if OPT.get('rep'):
        print(S.report())
    if G.TS:
        p('@wait vm:*')
        p('@mark end')
        p('s_nop 15\ns_nop 15\ns_nop 15\ns_nop 15\ns_nop 15\ns_nop 15\ns_nop 15\ns_nop 15')
        p('@mark flush')
        p('@manual on')
        p('s_load_dwordx2 s[60:61], s[0:1], 72')
        p('s_sub_u32 s62, %d, s%d' % (OPT.get('bud', 20000), BUD))
        p('v_writelane_b32 v0, s62, 63')
        p('v_lshrrev_b32 v16, 2, v%d' % L16)
        p('s_lshr_b32 s62, s%d, 2' % SFILL)
        p('v_add_u32 v16, s62, v16')
        p('s_waitcnt lgkmcnt(0)')
        p('global_store_dword v16, v0, s[60:61]')
    p('@manual on')
    p.label('main_end')
    p('s_endpgm')
    for L in range(2):
        slow_path(env, L)
    p('@stubs')
    p.lower(P)
    G.MARKS = sorted(p.marks, key=p.marks.get)
    return dict(name=name, grid=256, block=256, lds=163840, vgpr=256, agpr=256)
```

```python
def prologue(env):
    globals().update(env)
    p('.p2align 8')
    p('.type %s,@function' % name)
    p.label(name)
    p('s_cmp_ge_u32 s2, 256')
    p('s_cbranch_scc1 main_end')
    p('@manual on')
    p('@mark start')
    G.ws_srd(p)
    p('s_load_dwordx2 s[8:9], s[0:1], 56')
    p('s_load_dwordx2 s[12:13], s[0:1], 64')
    p('v_lshrrev_b32 v1, 6, v0')
    p('v_and_b32 v16, 63, v0')
    p('v_readfirstlane_b32 s3, v1')
    p('v_lshlrev_b32 v%d, 4, v16' % L16)
    XC, I, M, C, T2, KH, TBW, HD, QB_, M1, FB, T, U = range(54, 67)

    def lin(dst, terms, const=0):
        first = True
        for r, mul in terms:
            d = dst if first else U
            if mul & (mul - 1) == 0:
                p('s_lshl_b32 s%d, s%d, %d' % (d, r, mul.bit_length() - 1))
            else:
                p('s_mul_i32 s%d, s%d, 0x%x' % (d, r, mul))
            if not first:
                p('s_add_u32 s%d, s%d, s%d' % (dst, dst, U))
            first = False
        if const:
            p('s_add_u32 s%d, s%d, 0x%x' % (dst, dst, const))

    def sel(d, a, b):
        p('s_mov_b32 s%d, %d' % (d, b))
        p('s_cmov_b32 s%d, %d' % (d, a))

    p('s_and_b32 s%d, s2, 7' % XC)
    p('s_lshr_b32 s%d, s2, 3' % I)
    p('s_and_b32 s%d, s%d, 15' % (M, I))
    p('s_lshr_b32 s%d, s%d, 4' % (T, I))
    lin(C, [(XC, 2), (T, 1)])
    p('s_and_b32 s%d, s3, 1' % T2)
    p('s_lshr_b32 s%d, s3, 1' % KH)
    lin(SLW0, [(3, K)])
    lin(SWQ0, [(M, 32 * K), (3, K)], G.WQKV_F)
    lin(SXQ, [(C, 128 * K), (T2, 64 * K), (KH, 16 * K)])
    p('s_lshl_b32 s%d, s%d, 8' % (T, KH))
    p('v_xor_b32 v%d, s%d, v%d' % (LQ, T, L16))
    p('s_waitcnt lgkmcnt(0)')
    p('@manual off')
    nx = 0
    for q in range(4):
        for j in range(3):
            for hf in range(2):
                pc = q + 4 * hf
                p(dma(L16, SWQ0, j * 512 * K + pc * 4 * K, SLW0, WQR[j] * REG + pc * PAIR, 'tag=wq%d' % q, sc=False))
        for i in range(4):
            p(xq_load(0, 0, 4 * q + i))
    p('v_mov_b32 v0, 0')
    p('s_mov_b32 s10, 1024')
    p('s_mov_b32 s11, 0x00020000')
    p('s_mov_b32 s14, 0x200000')
    p('s_mov_b32 s15, 0x00020000')
    p('s_mov_b32 s%d, %d' % (BUD, OPT.get('bud', 20000)))
    p('s_mov_b32 s%d, 0x3f803f80' % ONES)
    lin(SCSP, [(KH, 16 * K), (M, K)], G.CSF)
    lin(SCSV, [(M, K)], G.CSF + 32 * K)
    p(qkv_cs())
    for i in range(16):
        p(xq_load(0, 1, i))
    p('s_and_b32 s%d, s%d, 1' % (T, M))
    lin(TBW, [(C, 4), (T, 2)])
    p('s_and_b32 s%d, s%d, 14' % (FB, M))
    lin(T, [(FB, 2), (3, 1)])
    lin(SLAB, [(TBW, 32 * K), (T, K)])
    lin(SOUT, [(TBW, 32 * K), (T, 32)])
    p('s_lshl_b32 s%d, s%d, 5' % (T, T))
    p('v_lshrrev_b32 v17, 5, v16')
    p('v_lshlrev_b32 v18, 3, v17')
    p('buffer_load_dwordx2 v[20:21], v18, s[8:11], s%d offen' % T)
    p('buffer_load_dwordx2 v[22:23], v18, s[8:11], s%d offen offset:16' % T)
    for X in range(2):
        p(ld(v(RES + 4 * X, 4), L16, SLAB, G.LB0 + G.X_F + 32 * K * X, sc=False))
    lin(SOL, [(TBW, 32 * K), (3, 8 * K)])
    p('s_lshr_b32 s%d, s%d, 2' % (T, M))
    lin(SSTW, [(TBW, 2 * K), (T, 512)])
    p('s_and_b32 s%d, s%d, 2' % (T, M))
    p('s_lshl_b32 s%d, s%d, 2' % (T, T))
    p('s_add_u32 s%d, s%d, s%d' % (SSTW, SSTW, T))
    lin(SSTC, [(C, 8 * K)])
    lin(SSTQ, [(C, 8 * K), (T2, 4 * K)])
    lin(SX1, [(C, 128 * K), (3, 4 * K)])
    lin(SLW, [(3, PAIR)])
    p('s_cmp_ge_u32 s%d, 14' % M)
    p('s_cselect_b32 s%d, 2, 0' % T)
    p('s_sub_u32 s%d, s%d, s%d' % (M1, M, T))
    lin(M1, [(M1, 4), (3, 1)])
    lin(SHS, [(C, 448 * K), (M1, 2 * K)])
    lin(SHL, [(TBW, 112 * K), (3, 28 * K)])
    lin(SW1, [(M1, 32 * K)], G.W1_F)
    lin(SCS1, [(M1, K)], G.CSF + 48 * K)
    lin(SV, [(M, 256 * K), (C, 4 * K), (T2, 2 * K)], G.KV_F)
    p('s_and_b32 s%d, s%d, 7' % (T, M))
    lin(SP, [(T, 256 * K), (C, 4 * K), (T2, 2 * K)], G.Q_F)
    p('s_lshr_b32 s%d, s%d, 3' % (T, M))
    p('s_lshl_b32 s%d, s%d, 10' % (T, T))
    p('s_add_u32 s%d, s%d, s%d' % (SP, SP, T))
    p('s_cmp_eq_u32 s%d, 0' % KH)
    p('s_cselect_b32 s%d, s%d, s%d' % (SP, SP, SV))
    p('s_cselect_b32 s%d, %s, 1.0' % (SQS, f2u(0.25 * 1.4426950408889634)))
    sel(SWP, WQR[0] * REG, WQR[1] * REG + 4 * PAIR)
    sel(SWR, WQR[1] * REG, WQR[0] * REG + 4 * PAIR)
    sel(SWV, WQR[2] * REG, WQR[2] * REG + 4 * PAIR)
    sel(T, 1024, 1536)
    p('s_add_u32 s%d, s%d, s%d' % (SV, SV, T))
    p('s_and_b32 s%d, s%d, 3' % (T, I))
    lin(HD, [(XC, 4), (T, 1)])
    p('s_lshr_b32 s%d, s%d, 2' % (QB_, I))
    p('s_and_b32 s%d, s%d, 15' % (T, HD))
    lin(SQ, [(T, 128 * K), (QB_, 8 * K), (3, 2 * K)], G.Q_F)
    p('s_lshr_b32 s%d, s%d, 4' % (T, HD))
    p('s_lshl_b32 s%d, s%d, 10' % (T, T))
    p('s_add_u32 s%d, s%d, s%d' % (SQ, SQ, T))
    lin(SKV, [(HD, 128 * K), (3, 4 * K)], G.KV_F)
    lin(SOS, [(QB_, 256 * K), (3, 64 * K), (HD, K)], G.O_F)
    p('s_add_u32 s%d, s%d, s%d' % (FB, FB, KH))
    lin(SW2A, [(FB, 112 * K), (3, 28 * K)], G.W2_F)
    lin(SWOA, [(FB, 32 * K), (3, 8 * K)], G.WO_F)
    p('s_xor_b32 s%d, s%d, 1' % (FB, FB))
    lin(SW2B, [(FB, 112 * K), (3, 28 * K)], G.W2_F)
    lin(SWOB, [(FB, 32 * K), (3, 8 * K)], G.WO_F)
    lin(SWQ, [(M, 32 * K), (3, 4 * K)], G.WQKV_F)
    lin(SFILL, [(2, 4 * K), (3, K)])
    p('s_lshr_b32 s%d, s%d, 2' % (SCTR, SFILL))
    p('s_and_b32 s%d, s%d, 0x3f00' % (SCTR, SCTR))
    p('s_lshl_b32 s%d, s3, 3' % T)
    p('s_lshl_b32 s%d, 0xff, s%d' % (SMASK, T))
    p('s_mov_b32 s%d, s%d' % (SMASK + 1, SMASK))
    p('v_add_u32 v%d, 0x10000, v%d' % (L16B, L16))
    p('s_lshl_b32 s%d, s%d, 8' % (T, T2))
    p('v_xor_b32 v%d, s%d, v%d' % (LW, T, L16))
    p('v_and_b32 v18, 15, v16')
    p('v_lshlrev_b32 v18, 4, v18')
    p('v_lshl_add_u32 v18, v17, 8, v18')
    p('v_bfe_u32 v19, v16, 4, 1')
    p('v_lshl_add_u32 v%d, v19, 17, v18' % VVS)
    p('v_cmp_eq_u32 vcc, 0, v19')
    p('v_mov_b32 v24, 4096')
    for q in range(4):
        p('v_add_u32 v25, %d, v18' % (K + (q >> 1) * 2 * K + (q & 1) * 512))
        p('v_cndmask_b32 v%d, v24, v25, vcc' % (VA + q))
        p('v_add_u32 v%d, %d, v%d' % (VA + 4 + q, 16 * PAIR, VA + q))
    p('v_bfe_u32 v19, v16, 3, 2')
    p('v_lshl_add_u32 v19, v19, 2, v%d' % L16)
    p('v_add_u32 v%d, s%d, v19' % (VCK, SLW))
    p('v_add_u32 v%d, %d, v%d' % (L16C, TOP, L16))
    for k in range(4):
        p('s_xor_b32 s%d, s3, %d' % (T, k))
        p('s_mul_i32 s%d, s%d, 6144' % (T, T))
        p('v_add_u32 v%d, s%d, v%d' % (XR + k, T, L16C))
    p('s_add_u32 s%d, s%d, %d' % (T, SLW, REG))
    p('v_add_u32 v%d, s%d, v%d' % (VWP, T, L16))
    p('s_lshl_b32 s%d, s3, 2' % T)
    p('v_add_u32 v%d, s%d, v%d' % (SW4, T, L16C))
    p('v_and_b32 v19, 31, v16')
    p('v_lshlrev_b32 v24, 4, v19')
    p('v_lshl_add_u32 v%d, v17, 2, v24' % VST)
    p('v_mul_u32_u24 v19, %d, v19' % PAIR)
    for i in range(4):
        p('v_mov_b32 v%d, s%d' % (24 + i, ONES))
    p('ds_write_b128 v19, v[24:27] offset:4096')
```

```python
import os
import struct
import sys

sys.path.insert(0, os.path.dirname(os.path.abspath(__file__)))
from asmlib import Prog, v, a_, s

MAIN = 'interleave_layers__mha_block__mixer_channel_mlp__prompt'

WQKV_F = 0x000000
WO_F = 0x180000
W1_F = 0x200000
W2_F = 0x400000
CSF = 0x5C0000
CTR = 0x5F0000
ST0 = 0x600000
STF = 0x620000
LB0 = 0x800000
LSTR = 0x1300000
X_F = 0x000000
Q_F = 0x200000
KV_F = 0x400000
O_F = 0x800000
X1_F = 0xA00000
H_F = 0xC00000
WS_BYTES = 0x10000000

MFMA = 'v_mfma_f32_32x32x16_bf16'
SC = ' sc1'
TS = False
OPT = {}


def f2u(x):
    return '0x%08x' % struct.unpack('<I', struct.pack('<f', x))[0]


def kernel_head(p, name):
    p('.p2align 8')
    p('.type %s,@function' % name)
    p.label(name)


def ws_srd(p):
    p('s_load_dwordx2 s[4:5], s[0:1], 80')
    p('s_mov_b32 s6, 0x%x' % WS_BYTES)
    p('s_mov_b32 s7, 0x00020000')


NST = 16


def mark(p, i):
    if TS:
        p('s_memrealtime s[%d:%d]' % (64 + 2 * i, 65 + 2 * i))


def dump_ts(p, slot_sgpr):
    if not TS:
        return
    p('s_load_dwordx2 s[100:101], s[0:1], 72')
    p('s_lshl_b32 s96, s2, 2')
    p('s_add_u32 s96, s96, s3')
    p('s_lshl_b32 s96, s96, 1')
    if slot_sgpr is not None:
        p('s_add_u32 s96, s96, %s' % slot_sgpr)
    p('s_lshl_b32 s96, s96, 6')
    p('s_mov_b64 exec, 1')
    p('v_mov_b32 v96, s96')
    p('s_waitcnt lgkmcnt(0)')
    for i in range(NST):
        p('v_mov_b32 v%d, s%d' % (80 + i, 64 + 2 * i))
    for q in range(4):
        p('global_store_dwordx4 v96, %s, s[100:101] offset:%d' % (v(80 + 4 * q, 4), 16 * q))
    p('s_waitcnt vmcnt(0)')
    p('s_mov_b64 exec, -1')


def gen_prep(p, name):
    NF = OPT.get('nf', 256)
    NC, NX, NW = 56, 256, 352
    kernel_head(p, name)
    if TS:
        for i in range(NST):
            p('s_mov_b64 s[%d:%d], 0' % (64 + 2 * i, 65 + 2 * i))
    mark(p, 0)
    p('s_cmp_ge_u32 s2, %d' % (NC + NX + NW + NF))
    p('s_cbranch_scc1 prep_end')
    ws_srd(p)
    p('v_lshrrev_b32 v1, 6, v0')
    p('v_and_b32 v2, 63, v0')
    p('v_readfirstlane_b32 s3, v1')
    p('v_lshlrev_b32 v3, 4, v2')
    p('s_cmp_lt_u32 s2, %d' % NC)
    p('s_cbranch_scc1 prep_c')
    p('s_cmp_ge_u32 s2, %d' % (NC + NX + NW))
    p('s_cbranch_scc1 prep_fill')
    p('s_sub_u32 s40, s2, %d' % NC)
    p('s_lshr_b32 s20, s40, 3')
    p('s_lshl_b32 s20, s20, 2')
    p('s_add_u32 s20, s20, s3')
    p('s_cmp_ge_u32 s20, (code_end-code_begin)>>10')
    p('s_cbranch_scc1 prep_nopf')
    p('s_getpc_b64 s[22:23]')
    p.label('prep_pc')
    p('s_lshl_b32 s20, s20, 10')
    p('s_add_u32 s20, s20, code_begin-prep_pc')
    p('s_add_u32 s22, s22, s20')
    p('s_addc_u32 s23, s23, 0')
    p('global_load_dwordx4 v[40:43], v3, s[22:23]')
    p.label('prep_nopf')
    p('s_cmp_ge_u32 s40, %d' % NX)
    p('s_cbranch_scc1 prep_w')
    p('s_load_dwordx2 s[8:9], s[0:1], 0')
    p('s_mov_b32 s10, 0x200000')
    p('s_mov_b32 s11, 0x00020000')
    p('s_lshl_b32 s12, s40, 3')
    p('s_lshl_b32 s13, s3, 1')
    p('s_add_u32 s12, s12, s13')
    p('s_lshl_b32 s13, s12, 10')
    p('s_waitcnt lgkmcnt(0)')
    p('buffer_load_dwordx4 v[4:7], v3, s[8:11], s13 offen')
    p('buffer_load_dwordx4 v[8:11], v3, s[8:11], s13 offen offset:1024')
    p('v_lshrrev_b32 v12, 1, v2')
    p('v_lshlrev_b32 v12, 10, v12')
    p('v_and_b32 v13, 1, v2')
    p('v_lshl_add_u32 v12, v13, 9, v12')
    p('v_cmp_eq_u32 vcc, 1, v13')
    p('s_lshr_b32 s14, s12, 5')
    p('s_and_b32 s15, s12, 31')
    p('s_lshl_b32 s16, s14, 15')
    p('s_lshl_b32 s17, s15, 4')
    p('s_add_u32 s16, s16, s17')
    p('s_add_u32 s16, s16, 0x%x' % (LB0 + X_F))
    p('s_lshl_b32 s18, s14, 11')
    p('s_add_u32 s18, s18, s17')
    p('s_add_u32 s18, s18, 0x%x' % ST0)
    p('v_sub_u32 v14, 63, v2')
    p('v_lshlrev_b32 v14, 9, v14')
    p('s_mov_b32 s19, 0x3f803f80')
    for r in (16, 17, 18, 19, 20, 21, 22, 23):
        p('v_mov_b32 v%d, 0' % r)
    p('s_waitcnt vmcnt(0)')
    mark(p, 1)
    for row in range(2):
        d = 4 + 4 * row
        st = 16 + 4 * row
        for i in range(4):
            p('v_dot2_f32_bf16 v%d, v%d, s19, v%d' % (st, d + i, st))
            p('v_dot2_f32_bf16 v%d, v%d, v%d, v%d' % (st + 1, d + i, d + i, st + 1))
    for row in range(2):
        d = 4 + 4 * row
        o = 24 + 8 * row
        p('v_cndmask_b32 v%d, v%d, v%d, vcc' % (o + 4, d + 2, d + 0))
        p('v_cndmask_b32 v%d, v%d, v%d, vcc' % (o + 5, d + 3, d + 1))
        p('v_mov_b32_dpp v%d, v%d quad_perm:[1,0,3,2] row_mask:0xf bank_mask:0xf' % (o + 6, o + 4))
        p('v_mov_b32_dpp v%d, v%d quad_perm:[1,0,3,2] row_mask:0xf bank_mask:0xf' % (o + 7, o + 5))
        p('v_cndmask_b32 v%d, v%d, v%d, vcc' % (o + 0, d + 0, o + 6))
        p('v_cndmask_b32 v%d, v%d, v%d, vcc' % (o + 1, d + 1, o + 7))
        p('v_cndmask_b32 v%d, v%d, v%d, vcc' % (o + 2, o + 6, d + 2))
        p('v_cndmask_b32 v%d, v%d, v%d, vcc' % (o + 3, o + 7, d + 3))
        p('buffer_store_dwordx4 %s, v12, s[4:7], s16 offen offset:%d' % (v(o, 4), 16 * row))
    for ctl in ('row_shr:1 row_mask:0xf bank_mask:0xf bound_ctrl:0',
                'row_shr:2 row_mask:0xf bank_mask:0xf bound_ctrl:0',
                'row_shr:4 row_mask:0xf bank_mask:0xf bound_ctrl:0',
                'row_shr:8 row_mask:0xf bank_mask:0xf bound_ctrl:0',
                'row_bcast:15 row_mask:0xa bank_mask:0xf',
                'row_bcast:31 row_mask:0xc bank_mask:0xf'):
        for r in (16, 17, 20, 21):
            p('v_add_f32_dpp v%d, v%d, v%d %s' % (r, r, r, ctl))
    p('s_mov_b32 exec_lo, 0')
    p('s_mov_b32 exec_hi, 0x70000000')
    for r in (16, 17, 20, 21):
        p('v_mov_b32 v%d, 0' % r)
    p('s_mov_b32 exec_hi, 0xf0000000')
    p('buffer_store_dwordx4 v[16:19], v14, s[4:7], s18 offen')
    p('buffer_store_dwordx4 v[20:23], v14, s[4:7], s18 offen offset:16')
    p('s_branch prep_fin')
    p.label('prep_w')
    p('s_sub_u32 s12, s40, %d' % NX)
    p('s_lshr_b32 s24, s3, 1')
    p('s_and_b32 s25, s3, 1')
    p('s_cmp_ge_u32 s12, 240')
    p('s_cbranch_scc1 prep_w2')
    p('s_lshr_b32 s13, s12, 4')
    p('s_and_b32 s14, s12, 15')
    p('s_mov_b32 s18, 32')
    p('s_cmp_ge_u32 s13, 8')
    p('s_cbranch_scc1 prep_w1')
    p('s_cmp_ge_u32 s13, 6')
    p('s_cbranch_scc1 prep_wo')
    p('s_load_dwordx2 s[8:9], s[0:1], 8')
    p('s_mov_b32 s10, %d' % (512 * 1536 * 2))
    p('s_mov_b32 s16, 3072')
    p('s_mov_b32 s17, 0x%x' % WQKV_F)
    p('s_branch prep_wgo')
    p.label('prep_wo')
    p('s_load_dwordx2 s[8:9], s[0:1], 16')
    p('s_mov_b32 s10, %d' % (512 * 512 * 2))
    p('s_mov_b32 s16, 1024')
    p('s_mov_b32 s17, 0x%x' % WO_F)
    p('s_sub_u32 s13, s13, 6')
    p('s_branch prep_wgo')
    p.label('prep_w1')
    p('s_load_dwordx2 s[8:9], s[0:1], 32')
    p('s_mov_b32 s10, %d' % (512 * 1792 * 2))
    p('s_mov_b32 s16, 3584')
    p('s_mov_b32 s17, 0x%x' % W1_F)
    p('s_sub_u32 s13, s13, 8')
    p('s_branch prep_wgo')
    p.label('prep_w2')
    p('s_load_dwordx2 s[8:9], s[0:1], 48')
    p('s_mov_b32 s10, %d' % (512 * 1792 * 2))
    p('s_mov_b32 s16, 1024')
    p('s_mov_b32 s17, 0x%x' % W2_F)
    p('s_mov_b32 s18, 112')
    p('s_sub_u32 s14, s12, 240')
    p('s_cmp_ge_u32 s14, 56')
    p('s_cselect_b32 s13, 1, 0')
    p('s_cselect_b32 s15, 56, 0')
    p('s_sub_u32 s14, s14, s15')
    p.label('prep_wgo')
    p('s_mov_b32 s11, 0x00020000')
    p('s_lshl_b32 s14, s14, 1')
    p('s_add_u32 s14, s14, s24')
    p('s_lshl_b32 s19, s14, 4')
    p('s_lshl_b32 s26, s25, 2')
    p('s_add_u32 s19, s19, s26')
    p('s_mul_i32 s19, s19, s16')
    p('s_lshl_b32 s26, s13, 9')
    p('s_add_u32 s30, s19, s26')
    p('s_add_u32 s31, s30, s16')
    p('s_add_u32 s32, s31, s16')
    p('s_add_u32 s33, s32, s16')
    p('s_lshl_b32 s26, s16, 3')
    for i in range(4):
        p('s_add_u32 s%d, s%d, s26' % (34 + i, 30 + i))
    p('v_lshlrev_b32 v4, 3, v2')
    p('s_waitcnt lgkmcnt(0)')
    for j in range(8):
        p('buffer_load_dwordx2 %s, v4, s[8:11], s%d offen' % (v(8 + 2 * j, 2), 30 + j))
    p('s_lshl_b32 s26, s18, 10')
    p('v_lshrrev_b32 v5, 3, v2')
    p('v_and_b32 v6, 7, v2')
    p('v_lshlrev_b32 v6, 6, v6')
    p('v_mad_u32_u24 v5, v5, s26, v6')
    p('s_mul_i32 s27, s13, s18')
    p('s_lshl_b32 s27, s27, 3')
    p('s_add_u32 s27, s27, s14')
    p('s_lshl_b32 s27, s27, 10')
    p('s_lshl_b32 s28, s25, 9')
    p('s_add_u32 s27, s27, s28')
    p('s_add_u32 s27, s27, s17')
    p('s_mov_b32 s28, 0x05040100')
    p('s_mov_b32 s29, 0x07060302')
    p('s_waitcnt vmcnt(0)')
    mark(p, 1)
    for i in range(4):
        for m in range(4):
            lo = 8 + 2 * (2 * m) + (i >> 1)
            hi = 8 + 2 * (2 * m + 1) + (i >> 1)
            p('v_perm_b32 v%d, v%d, v%d, s%d' % (24 + 4 * i + m, hi, lo, 28 + (i & 1)))
        p('buffer_store_dwordx4 %s, v5, s[4:7], s27 offen offset:%d' % (v(24 + 4 * i, 4), 16 * i))
    p('s_branch prep_fin')
    p.label('prep_c')
    p('s_cmp_lt_u32 s2, 52')
    p('s_cbranch_scc1 prep_cs')
    p('s_sub_u32 s12, s2, 52')
    p('s_lshl_b32 s12, s12, 13')
    p('s_add_u32 s12, s12, 0x%x' % CTR)
    p('v_lshlrev_b32 v4, 4, v0')
    for r in range(8, 12):
        p('v_mov_b32 v%d, 0' % r)
    p('s_add_u32 s13, s12, 4096')
    p('s_waitcnt lgkmcnt(0)')
    for r in (12, 13):
        p('buffer_store_dwordx4 v[8:11], v4, s[4:7], s%d offen' % r)
    p('s_branch prep_fin')
    p.label('prep_fill')
    p('s_sub_u32 s12, s2, %d' % (NC + NX + NW))
    p('s_lshl_b32 s12, s12, 15')
    p('s_add_u32 s12, s12, 0x%x' % (LB0 + Q_F))
    p('v_lshlrev_b32 v4, 4, v0')
    for r in range(8, 12):
        p('v_mov_b32 v%d, -1' % r)
    p('s_waitcnt lgkmcnt(0)')
    for i in range(8):
        p('buffer_store_dwordx4 v[8:11], v4, s[4:7], s12 offen')
        if i < 7:
            p('s_add_u32 s12, s12, 4096')
    p('s_branch prep_fin')
    p.label('prep_cs')
    p('s_cmp_ge_u32 s2, 24')
    p('s_cbranch_scc1 prep_cs1')
    p('s_load_dwordx2 s[8:9], s[0:1], 8')
    p('s_load_dwordx2 s[12:13], s[0:1], 40')
    p('s_mov_b32 s10, %d' % (512 * 1536 * 2))
    p('s_mov_b32 s16, 3072')
    p('s_lshl_b32 s17, s2, 7')
    p('s_mov_b32 s14, 0')
    p('s_branch prep_csgo')
    p.label('prep_cs1')
    p('s_load_dwordx2 s[8:9], s[0:1], 32')
    p('s_load_dwordx2 s[12:13], s[0:1], 40')
    p('s_mov_b32 s10, %d' % (512 * 1792 * 2))
    p('s_mov_b32 s16, 3584')
    p('s_sub_u32 s17, s2, 24')
    p('s_lshl_b32 s17, s17, 7')
    p('s_mov_b32 s14, 3584')
    p.label('prep_csgo')
    p('s_mov_b32 s11, 0x00020000')
    p('s_mov_b32 s15, 0x00020000')
    p('v_lshrrev_b32 v4, 3, v0')
    p('v_and_b32 v5, 7, v0')
    p('v_lshlrev_b32 v6, 4, v5')
    p('v_mad_u32_u24 v6, v4, s16, v6')
    p('s_lshl_b32 s18, s16, 5')
    p('s_mov_b32 s19, s17')
    p('v_lshlrev_b32 v7, 1, v2')
    p('s_waitcnt lgkmcnt(0)')
    for j in range(16):
        p('buffer_load_dwordx4 %s, v6, s[8:11], s19 offen' % v(16 + 4 * j, 4))
        if j < 15:
            p('s_add_u32 s19, s19, s18')
    p('buffer_load_ushort v80, v7, s[12:15], s17 offen')
    for r in range(8, 16):
        p('v_mov_b32 v%d, 0' % r)
    p('s_mov_b32 s20, 0x00003f80')
    p('s_mov_b32 s21, 0x3f800000')
    for j in range(16):
        p('s_waitcnt vmcnt(%d)' % (16 - j))
        for i in range(4):
            p('v_dot2_f32_bf16 v%d, v%d, s20, v%d' % (8 + 2 * i, 16 + 4 * j + i, 8 + 2 * i))
            p('v_dot2_f32_bf16 v%d, v%d, s21, v%d' % (9 + 2 * i, 16 + 4 * j + i, 9 + 2 * i))
    p('v_lshlrev_b32 v6, 5, v0')
    p('ds_write_b128 v6, v[8:11]')
    p('ds_write_b128 v6, v[12:15] offset:16')
    p('s_waitcnt lgkmcnt(0)')
    p('s_barrier')
    p('s_cmp_lg_u32 s3, 0')
    p('s_cbranch_scc1 prep_fin')
    p('v_lshlrev_b32 v6, 2, v2')
    for g in range(0, 32, 2):
        p('ds_read2st64_b32 %s, v6 offset0:%d offset1:%d' % (v(16 + g, 2), g, g + 1))
    p('s_waitcnt lgkmcnt(0)')
    for st in (16, 8, 4, 2, 1):
        for i in range(st):
            p('v_add_f32 v%d, v%d, v%d' % (16 + i, 16 + i, 16 + st + i))
    p('s_sub_u32 s22, s2, 16')
    p('s_cmp_lt_u32 s22, 8')
    p('s_cselect_b32 s22, 0.5, 1.0')
    p('v_mul_f32 v16, s22, v16')
    p('v_cvt_pk_bf16_f32 v9, v16, v16')
    p('v_lshlrev_b32 v10, 16, v9')
    p('v_sub_f32 v10, v16, v10')
    p('v_cvt_pk_bf16_f32 v8, v16, v10')
    p('v_and_b32 v9, 0xffff, v9')
    p('s_waitcnt vmcnt(0)')
    p('v_lshl_or_b32 v9, v80, 16, v9')
    p('v_mov_b32 v10, v80')
    for r in range(11, 16):
        p('v_mov_b32 v%d, 0' % r)
    p('v_lshrrev_b32 v4, 5, v2')
    p('v_and_b32 v5, 31, v2')
    p('v_lshlrev_b32 v5, 4, v5')
    p('v_lshl_add_u32 v5, v4, 10, v5')
    p('s_lshl_b32 s17, s2, 11')
    p('s_add_u32 s17, s17, 0x%x' % CSF)
    p('buffer_store_dwordx4 v[8:11], v5, s[4:7], s17 offen')
    p('buffer_store_dwordx4 v[12:15], v5, s[4:7], s17 offen offset:512')
    p.label('prep_fin')
    if TS:
        p('s_mov_b64 exec, -1')
        p('s_waitcnt vmcnt(0)')
        mark(p, 15)
        dump_ts(p, None)
    p.label('prep_end')
    p('s_endpgm')
    return dict(name=name, grid=NC + NX + NW + NF, block=256, lds=8192, vgpr=100 if TS else 84, agpr=0)


from gen3_main import gen_main


def build(out_path):
    p = Prog()
    ks = {}
    ks['prep'] = gen_prep(p, MAIN + '_kernel')
    p('.p2align 8')
    p.label('code_begin')
    ks['main'] = gen_main(p, 'stack_kernel', sys.modules[__name__])
    p.label('code_end')
    p('s_endpgm')
    p.fix()
    order = ['prep', 'main']
    head = ['; generated by gen/gen3.py -- kernel list for ' + MAIN]
    for o in order:
        k = ks[o]
        head.append('; @launch kernel=%s grid=(%d,1,1) block=(%d,1,1) lds=%d' % (k['name'], k['grid'], k['block'], k['lds']))
    if TS:
        head.append('; marks: ' + ' '.join(sys.modules[__name__].MARKS))
    head += ['.amdgcn_target "amdgcn-amd-amdhsa--gfx950"', '.text']
    for k in ks.values():
        head.append('.globl %s' % k['name'])
    tail = ['.section .rodata,"a"']
    for k in ks.values():
        acc = -(-k['vgpr'] // 4) * 4
        tot = acc + k['agpr'] if k['agpr'] else k['vgpr']
        tail += ['.p2align 6',
                 '.amdhsa_kernel %s' % k['name'],
                 '  .amdhsa_next_free_vgpr %d' % tot,
                 '  .amdhsa_next_free_sgpr 102',
                 '  .amdhsa_accum_offset %d' % acc,
                 '  .amdhsa_group_segment_fixed_size 0',
                 '  .amdhsa_kernarg_size 88',
                 '  .amdhsa_user_sgpr_count 2',
                 '  .amdhsa_user_sgpr_kernarg_segment_ptr 1',
                 '  .amdhsa_system_sgpr_workgroup_id_x 1',
                 '.end_amdhsa_kernel']
    with open(out_path, 'w') as f:
        f.write('\n'.join(head) + '\n' + p.text() + '\n'.join(tail) + '\n')


if __name__ == '__main__':
    out = sys.argv[1] if len(sys.argv) > 1 else 'p.s'
    TS = os.environ.get('TS', '0') == '1'
    for kv in sys.argv[2:]:
        k, _, val = kv.partition('=')
        OPT[k] = int(val, 0) if val else 1
    build(out)
```
